```python
import torch

def _softmax(x, axis=-1):
    return torch.softmax(x, dim=axis)
def _gelu(x):
    return torch.nn.functional.gelu(x, approximate="tanh")
def _silu(x):
    return torch.nn.functional.silu(x)
def _sigmoid(x):
    return torch.sigmoid(x)
def _layernorm(x, axis=-1, eps=1e-5):
    m = x.mean(dim=axis, keepdim=True)
    v = x.var(dim=axis, keepdim=True, unbiased=False)
    return (x - m) / torch.sqrt(v + eps)
def _scatter_add(tgt, idx, src, axis=0):
    return tgt.clone().index_add_(axis, idx, src)
def _segment_sum(src, seg, n):
    out = torch.zeros((n,) + src.shape[1:], dtype=src.dtype)
    return out.index_add_(0, seg, src)
def _pad(x, pw):
    flat = tuple(v for pair in reversed(pw) for v in pair)
    return torch.nn.functional.pad(x, flat)

kernel_name = 'standalone__linear_kernel_hedgehog__prompt'

def setup_inputs():

    _w = (lambda a: (lambda t: t.to(torch.bfloat16) if t.is_floating_point() else t)(torch.as_tensor(a)))
    B, S, D, H = 1, 2048, 1024, 32
    Dh = D // H
    return {
        "x": _w((lambda *s: torch.randn(*s, dtype=torch.bfloat16) * 0.4)(B, S, D)),
        "wqkv": _w((lambda *s: torch.randn(*s, dtype=torch.bfloat16) * 0.4)(D, 3 * D)),
        "w_phi": _w((lambda *s: torch.randn(*s, dtype=torch.bfloat16) * 0.4)(H, Dh, Dh) * (Dh ** -0.5)),
        "wo": _w((lambda *s: torch.randn(*s, dtype=torch.bfloat16) * 0.05)(D, D)),
    }

def reference(x, wqkv, w_phi, wo):
    B, S, D = x.shape
    H = 32; Dh = D // H
    qkv = (lambda x, *d: x.permute(*d))((x @ wqkv).reshape(B, S, 3, H, Dh), 2, 0, 3, 1, 4)
    q, k, v = qkv[0], qkv[1], qkv[2]
    pq = torch.einsum("bhsd,hdf->bhsf", q, w_phi)
    pk = torch.einsum("bhsd,hdf->bhsf", k, w_phi)
    phi_q = torch.concatenate([_softmax(pq, axis=-1), _softmax(-pq, axis=-1)], axis=-1)
    phi_k = torch.concatenate([_softmax(pk, axis=-1), _softmax(-pk, axis=-1)], axis=-1)
    kv = torch.einsum("bhsf,bhsd->bhfd", phi_k, v)
    z  = torch.einsum("bhsf->bhf", phi_k)
    num = torch.einsum("bhqf,bhfd->bhqd", phi_q, kv)
    den = torch.einsum("bhqf,bhf->bhq", phi_q, z)[..., None] + 1e-6
    o = num / den
    return (lambda x, *d: x.permute(*d))(o, 0, 2, 1, 3).reshape(B, S, D) @ wo
```

```python
HEADER = """; Kernarg layout: x(0) wqkv(8) w_phi(16) wo(24) out(32) debug(40) ws(48)
"""

class Asm:
    def __init__(self):
        self.lines = []
        self._lab = 0
    def __call__(self, s, *args):
        if args:
            s = s % args
        for l in s.split("\n"):
            self.lines.append("    " + l.strip() if not l.strip().endswith(":") else l.strip())
    def label(self, name):
        self.lines.append(name + ":")
    def newlabel(self, base="L"):
        self._lab += 1
        return "%s_%d" % (base, self._lab)
    def comment(self, s):
        self.lines.append("    ; " + s)
    def text(self):
        return "\n".join(self.lines) + "\n"

def kernel_begin(a, name):
    a.lines.append(".globl %s" % name)
    a.lines.append(".p2align 8")
    a.lines.append(".type %s,@function" % name)
    a.label(name)

def kd(name, vgpr, sgpr, accum_offset=None):
    if accum_offset is None:
        accum_offset = min(256, (vgpr + 3) // 4 * 4)
    return """.amdhsa_kernel %s
  .amdhsa_next_free_vgpr %d
  .amdhsa_next_free_sgpr %d
  .amdhsa_accum_offset %d
  .amdhsa_group_segment_fixed_size 0
  .amdhsa_kernarg_size 56
  .amdhsa_user_sgpr_count 2
  .amdhsa_user_sgpr_kernarg_segment_ptr 1
  .amdhsa_system_sgpr_workgroup_id_x 1
.end_amdhsa_kernel
""" % (name, vgpr, sgpr, accum_offset)

def file_text(launches, body, kds):
    out = HEADER
    for (n, g, b, l) in launches:
        out += "; @launch kernel=%s grid=(%d,1,1) block=(%d,1,1) lds=%d\n" % (n, g, b, l)
    out += '.amdgcn_target "amdgcn-amd-amdhsa--gfx950"\n.text\n'
    out += body
    out += '.section .rodata,"a"\n'
    for k in kds:
        out += ".p2align 6\n" + k
    return out

def v(i, n=1):
    return "v%d" % i if n == 1 else "v[%d:%d]" % (i, i + n - 1)
def s(i, n=1):
    return "s%d" % i if n == 1 else "s[%d:%d]" % (i, i + n - 1)
def acc(i, n=1):
    return "a%d" % i if n == 1 else "a[%d:%d]" % (i, i + n - 1)
```

```python
import re

REG_RE = re.compile(r'^(-|abs\()?([vsa])(\d+)\)?$')
RNG_RE = re.compile(r'^(-)?([vsa])\[(\d+):(\d+)\]$')

def regs_of(op):
    op = op.strip()
    if op.startswith('-'): op = op[1:]
    if op.startswith('abs(') and op.endswith(')'): op = op[4:-1]
    if op.startswith('|') and op.endswith('|'): op = op[1:-1]
    m = re.match(r'^([vsa])(\d+)$', op)
    if m: return [(m.group(1), int(m.group(2)))]
    m = re.match(r'^([vsa])\[(\d+):(\d+)\]$', op)
    if m: return [(m.group(1), i) for i in range(int(m.group(2)), int(m.group(3)) + 1)]
    if op == 'vcc': return [('s', 106), ('s', 107)]
    if op == 'vcc_lo': return [('s', 106)]
    if op == 'vcc_hi': return [('s', 107)]
    if op == 'exec': return [('s', 126), ('s', 127)]
    if op == 'm0': return [('s', 124)]
    return []

TRANS = ('v_exp_f32', 'v_log_f32', 'v_rcp_f32', 'v_rsq_f32', 'v_sqrt_f32', 'v_sin_f32', 'v_cos_f32', 'v_rcp_iflag_f32')

class Ins:
    def __init__(self, text):
        self.text = text
        t = text.split(';')[0].strip()
        self.op = None
        self.defs = []; self.uses = []
        self.kind = 'other'
        self.states = 1
        if not t or t.endswith(':') or t.startswith('.'):
            self.kind = 'label' if t.endswith(':') else 'none'
            self.states = 0
            return
        parts = t.split(None, 1)
        op = parts[0]; self.op = op
        rest = parts[1] if len(parts) > 1 else ''
        ops = []; cur = ''; depth = 0
        for ch in rest:
            if ch in '[(': depth += 1
            if ch in '])': depth -= 1
            if ch == ',' and depth == 0:
                ops.append(cur.strip()); cur = ''
            else:
                cur += ch
        if cur.strip(): ops.append(cur.strip())
        mods = ''
        if ops:
            sp = ops[-1].split(None, 1)
            if len(sp) > 1 and not ops[-1].startswith('hwreg'):
                ops[-1] = sp[0]; mods = sp[1]
        self.mods = mods; self.ops = ops
        R = [regs_of(o) for o in ops]
        base = op.replace('_e32', '').replace('_e64', '').replace('_dpp', '').replace('_sdwa', '')
        self.base = base
        self.dpp = ('quad_perm' in mods or 'row_' in mods or 'wave_' in mods or op.endswith('_dpp'))
        self.opsel = ('op_sel:' in mods and not base.startswith('v_pk_') and not base.startswith('v_mfma')) or op.endswith('_sdwa') or 'dst_sel' in mods
        if op == 's_nop':
            self.kind = 'nop'; self.states = int(ops[0], 0) + 1
        elif op.startswith('v_mfma'):
            self.kind = 'mfma'
            self.defs = R[0]; self.A = R[1]; self.B = R[2]; self.C = R[3]
            self.uses = R[1] + R[2] + R[3]
            self.passes = 8 if '32x32x16' in op else (4 if '16x16x32' in op else None)
            assert self.passes, op
        elif op.startswith('v_'):
            self.kind = 'valu'
            if base.startswith('v_permlane') and 'swap' in base:
                self.defs = R[0] + R[1]; self.uses = R[0] + R[1]
            elif base in ('v_add_co_u32', 'v_sub_co_u32', 'v_subrev_co_u32', 'v_addc_co_u32', 'v_subb_co_u32', 'v_div_scale_f32', 'v_mad_u64_u32'):
                self.defs = R[0] + R[1]; self.uses = sum(R[2:], [])
            else:
                self.defs = R[0]; self.uses = sum(R[1:], [])
                if base in ('v_fmac_f32', 'v_pk_fmac_f16', 'v_dot2c_f32_bf16', 'v_writelane_b32') or self.dpp:
                    self.uses += R[0]
                if base == 'v_cndmask_b32' and len(ops) == 3:
                    self.uses += regs_of('vcc')
        elif op.startswith('ds_'):
            self.kind = 'ds'
            if op.startswith('ds_read') or 'permute' in op or 'swizzle' in op or '_rtn' in op:
                self.defs = R[0]; self.uses = sum(R[1:], [])
            else:
                self.uses = sum(R, [])
        elif op.startswith('buffer_') or op.startswith('global_'):
            self.kind = 'vmem'
            allm = (mods + ' ').split()
            self.lds = ('lds' in allm) or ('_lds_' in op)
            if op.startswith('buffer_inv') or op.startswith('buffer_wbl2'):
                pass
            elif 'load' in op and not self.lds:
                self.defs = R[0]; self.uses = sum(R[1:], [])
            elif 'atomic' in op:
                self.uses = sum(R, [])
                if 'sc0' in allm: self.defs = R[0]
            else:
                self.uses = sum(R, [])
            self.widestore = ('store' in op and ('x3' in op or 'x4' in op))
            if self.widestore:
                self.data = R[0] if op.startswith('buffer_') else R[1]
        elif op.startswith('s_'):
            self.kind = 'salu'
            if op.startswith('s_cmp') or op.startswith('s_cbranch') or op.startswith('s_branch') or op in ('s_waitcnt', 's_barrier', 's_endpgm', 's_setprio', 's_sleep', 's_setreg_b32', 's_bitcmp0_b32', 's_bitcmp1_b32'):
                self.uses = sum(R, [])
            else:
                self.defs = R[0] if R else []
                self.uses = sum(R[1:], [])
                if 'saveexec' in op: self.defs = self.defs + regs_of('exec')

def required(p, c):
    req = 0
    pd = set(p.defs); cu = set(c.uses); cd = set(c.defs)
    if p.kind == 'valu':
        vd = {r for r in pd if r[0] in 'va'}; sd = {r for r in pd if r[0] == 's'}
        if c.kind == 'mfma' and vd & cu: req = max(req, 2)
        if c.kind == 'valu':
            if vd & cu:
                if c.base.startswith('v_permlane'): req = max(req, 2)
                if c.dpp: req = max(req, 2)
                if c.base in ('v_readlane_b32', 'v_readfirstlane_b32'): req = max(req, 1)
                if p.base in TRANS: req = max(req, 1)
                if p.opsel: req = max(req, 1)
            if p.opsel and vd & cd: req = max(req, 1)
            if sd & cu:
                req = max(req, 4 if c.base in ('v_readlane_b32', 'v_writelane_b32') else 2)
        if c.kind == 'vmem' and sd & cu: req = max(req, 5)
        if c.kind == 'salu' and sd & cu: req = max(req, 1)
    if p.kind == 'mfma':
        big = p.passes == 8
        if c.kind == 'mfma':
            if pd & (set(c.A) | set(c.B)): req = max(req, 12 if big else 8)
            if pd & set(c.C):
                if not (p.defs == c.C and p.passes == c.passes): req = max(req, 10 if big else 6)
            elif pd & cd: req = max(req, 10 if big else 6)
        elif c.kind in ('valu', 'ds', 'vmem'):
            if pd & (cu | cd): req = max(req, 12 if big else 8)
        if c.kind == 'valu' and set(p.C) & cd: req = max(req, 7 if big else 3)
    if p.kind == 'salu' and ('s', 124) in pd:
        if c.kind == 'vmem' and getattr(c, 'lds', False): req = max(req, 1)
    if p.kind == 'vmem' and getattr(p, 'widestore', False):
        if set(p.data) & cd: req = max(req, 2 if c.kind == 'valu' else 1)
    return req

def fix(lines, verbose=False):
    out = []
    n_ins = 0
    for l in lines:
        c = Ins(l)
        if c.kind in ('label', 'none'):
            out.append(c); continue
        need = 0
        dist = 0
        for p in reversed(out):
            if p.kind in ('label', 'none'): continue
            if dist >= 20: break
            r = required(p, c)
            if r > dist: need = max(need, r - dist)
            dist += p.states
            if p.op in ('s_branch', 's_endpgm', 's_setpc_b64'): break
        while need > 0:
            k = min(need, 16)
            out.append(Ins("    s_nop %d" % (k - 1)))
            n_ins += 1
            need -= k
        out.append(c)
    if verbose: print("hazard: inserted %d s_nop" % n_ins)
    return [i.text for i in out]

def check_backedges(lines):
    ins = [Ins(l) for l in lines]
    labels = {}
    for i, x in enumerate(ins):
        if x.kind == 'label': labels[x.text.strip()[:-1]] = i
    probs = []
    for i, x in enumerate(ins):
        if x.op and (x.op.startswith('s_cbranch') or x.op == 's_branch'):
            tgt = x.ops[0]
            if tgt in labels:
                j = labels[tgt]
                tail = [y for y in ins[max(0, i - 40):i + 1] if y.kind not in ('label', 'none')]
                head = [y for y in ins[j:j + 60] if y.kind not in ('label', 'none')]
                seq = tail + head
                nt = len(tail)
                for ci in range(nt, len(seq)):
                    dist = 0
                    for pi in range(ci - 1, -1, -1):
                        if pi < nt:
                            r = required(seq[pi], seq[ci])
                            if r > dist: probs.append((seq[pi].text.strip(), seq[ci].text.strip(), r, dist))
                        dist += seq[pi].states
                        if dist >= 20: break
                    if seq[ci].op in ('s_branch', 's_endpgm'): break
    return probs
```

```python
import sys
from asmlib import *
import hazard

LOG2E = 0x3fb8aa3b
WS_P1 = 0x100000
WS_P2 = 0xA00000
WS_O  = 0x1000000
WS_ST = 0x8000000
SLOT = 40960
TAGC = 0x9E3779B9
SPIN = 200000

class Cfg:
    stamps = False
    rot = True
    round_p = True
    round_nd = True

def stamp(a, cfg, idx):
    if cfg.stamps:
        a("s_memrealtime s[%d:%d]" % (64 + 2 * idx, 65 + 2 * idx))

def write_stamps(a, cfg, n, rec_sgpr, lane_v, kidx):
    if not cfg.stamps: return
    a("s_waitcnt lgkmcnt(0)")
    a("s_mul_i32 s60, %s, %d" % (rec_sgpr, n * 8))
    a("s_add_u32 s60, s60, %d" % (WS_ST + kidx * 0x10000))
    a("v_mov_b32 v2, s60")
    a("v_cmp_eq_u32 vcc, 0, %s" % lane_v)
    a("s_and_saveexec_b64 s[62:63], vcc")
    for i in range(n):
        a("v_mov_b32 v4, s%d" % (64 + 2 * i)); a("v_mov_b32 v5, s%d" % (65 + 2 * i))
        a("buffer_store_dwordx2 v[4:5], v2, s[28:31], 0 offen offset:%d" % (8 * i))
        a("s_waitcnt vmcnt(0)")
    a("s_mov_b64 exec, s[62:63]")

def softmax_tile(a, cfg, ACC, OUT, T, P, EP, EN, M, WPHI):
    for j in range(8):
        a("v_cvt_pk_bf16_f32 v%d, v%d, v%d" % (T + j, ACC + 2 * j, ACC + 2 * j + 1))
    a("v_mfma_f32_32x32x16_bf16 %s, %s, %s, 0" % (v(P, 16), v(WPHI, 4), v(T, 4)))
    a("v_mfma_f32_32x32x16_bf16 %s, %s, %s, %s" % (v(P, 16), v(WPHI + 4, 4), v(T + 4, 4), v(P, 16)))
    if cfg.round_p:
        for j in range(8):
            a("v_cvt_pk_bf16_f32 v%d, v%d, v%d" % (T + j, P + 2 * j, P + 2 * j + 1))
        for j in range(8):
            a("v_lshlrev_b32 v%d, 16, v%d" % (P + 2 * j, T + j))
            a("v_and_b32 v%d, 0xffff0000, v%d" % (P + 2 * j + 1, T + j))
    mx, mn, t0, t1 = M, M + 2, M + 4, M + 6
    a("v_max3_f32 v%d, v%d, v%d, v%d" % (mx, P, P + 1, P + 2))
    a("v_min3_f32 v%d, v%d, v%d, v%d" % (mn, P, P + 1, P + 2))
    for i in range(3, 15, 2):
        a("v_max3_f32 v%d, v%d, v%d, v%d" % (mx, mx, P + i, P + i + 1))
        a("v_min3_f32 v%d, v%d, v%d, v%d" % (mn, mn, P + i, P + i + 1))
    a("v_max_f32 v%d, v%d, v%d" % (mx, mx, P + 15))
    a("v_min_f32 v%d, v%d, v%d" % (mn, mn, P + 15))
    a("v_mov_b32 v%d, v%d" % (t0, mx))
    a("v_mov_b32 v%d, v%d" % (t1, mn))
    a("v_permlane32_swap_b32 v%d, v%d" % (mx, t0))
    a("v_permlane32_swap_b32 v%d, v%d" % (mn, t1))
    a("v_max_f32 v%d, v%d, v%d" % (mx, mx, t0))
    a("v_min_f32 v%d, v%d, v%d" % (mn, mn, t1))
    a("v_mul_f32 v%d, s42, v%d" % (mx, mx))
    a("v_mul_f32 v%d, s40, v%d" % (mn, mn))
    for j in range(8):
        a("v_pk_fma_f32 %s, %s, s[40:41], %s op_sel_hi:[1,1,0]" % (v(EP + 2 * j, 2), v(P + 2 * j, 2), v(mx, 2)))
        a("v_pk_fma_f32 %s, %s, s[42:43], %s op_sel_hi:[1,1,0]" % (v(EN + 2 * j, 2), v(P + 2 * j, 2), v(mn, 2)))
    for i in range(16):
        a("v_exp_f32 v%d, v%d" % (EP + i, EP + i))
        a("v_exp_f32 v%d, v%d" % (EN + i, EN + i))
    for (E, S) in ((EP, P), (EN, P + 8)):
        for j in range(4):
            a("v_pk_add_f32 %s, %s, %s" % (v(S + 2 * j, 2), v(E + 4 * j, 2), v(E + 4 * j + 2, 2)))
    for S in (P, P + 8):
        a("v_pk_add_f32 %s, %s, %s" % (v(S, 2), v(S, 2), v(S + 2, 2)))
        a("v_pk_add_f32 %s, %s, %s" % (v(S + 4, 2), v(S + 4, 2), v(S + 6, 2)))
    for S in (P, P + 8):
        a("v_pk_add_f32 %s, %s, %s" % (v(S, 2), v(S, 2), v(S + 4, 2)))
    a("v_add_f32 v%d, v%d, v%d" % (mx, P, P + 1))
    a("v_add_f32 v%d, v%d, v%d" % (mn, P + 8, P + 9))
    a("v_mov_b32 v%d, v%d" % (t0, mx))
    a("v_mov_b32 v%d, v%d" % (t1, mn))
    a("v_permlane32_swap_b32 v%d, v%d" % (mx, t0))
    a("v_permlane32_swap_b32 v%d, v%d" % (mn, t1))
    a("v_add_f32 v%d, v%d, v%d" % (mx, mx, t0))
    a("v_add_f32 v%d, v%d, v%d" % (mn, mn, t1))
    a("v_rcp_f32 v%d, v%d" % (mx, mx))
    a("v_rcp_f32 v%d, v%d" % (mn, mn))
    for j in range(8):
        a("v_pk_mul_f32 %s, %s, %s op_sel_hi:[1,0]" % (v(EP + 2 * j, 2), v(EP + 2 * j, 2), v(mx, 2)))
        a("v_pk_mul_f32 %s, %s, %s op_sel_hi:[1,0]" % (v(EN + 2 * j, 2), v(EN + 2 * j, 2), v(mn, 2)))
    for j in range(8):
        a("v_cvt_pk_bf16_f32 v%d, v%d, v%d" % (OUT + j, EP + 2 * j, EP + 2 * j + 1))
        a("v_cvt_pk_bf16_f32 v%d, v%d, v%d" % (OUT + 8 + j, EN + 2 * j, EN + 2 * j + 1))

def get_tag(a, vt, zero_v):
    L = a.newlabel("L_tag"); D = a.newlabel("L_tagd")
    a("s_mov_b32 s45, 0")
    a.label(L)
    a("buffer_load_dwordx2 %s, v%d, s[36:39], 0 offen sc1" % (v(vt, 2), zero_v))
    a("s_waitcnt vmcnt(0)")
    a("v_readfirstlane_b32 s44, v%d" % vt)
    a("v_readfirstlane_b32 s46, v%d" % (vt + 1))
    a("s_cmp_eq_u32 s46, 1")
    a("s_cbranch_scc1 %s" % D)
    a("s_add_u32 s45, s45, 1")
    a("s_cmp_lt_u32 s45, %d" % SPIN)
    a("s_cbranch_scc1 %s" % L)
    a.label(D)

def gen_k1(cfg):
    a = Asm()
    name = "hh_k1_kernel"
    kernel_begin(a, name)
    a("s_cmp_ge_u32 s2, 256")
    a("s_cbranch_scc1 L1_end")
    a("s_load_dwordx4 s[4:7], s[0:1], 0")
    a("s_load_dwordx2 s[8:9], s[0:1], 16")
    a("s_load_dwordx4 s[12:15], s[0:1], 40")
    stamp(a, cfg, 0)
    a("v_lshrrev_b32 v1, 6, v0")
    a("v_and_b32 v0, 63, v0")
    a("v_readfirstlane_b32 s3, v1")
    a("s_and_b32 s10, s2, 7"); a("s_lshr_b32 s11, s2, 3")
    a("s_and_b32 s51, s10, 1"); a("s_lshr_b32 s52, s10, 1")
    a("s_and_b32 s53, s11, 7"); a("s_lshr_b32 s54, s11, 3")
    a("s_lshl_b32 s48, s51, 3"); a("s_add_u32 s48, s48, s53")
    a("s_lshl_b32 s49, s52, 2"); a("s_add_u32 s49, s49, s54")
    if cfg.rot:
        a("s_add_u32 s50, s51, s52"); a("s_and_b32 s50, s50, 3")
        a("s_lshl_b32 s53, s53, 1"); a("s_lshl_b32 s54, s54, 2")
        a("s_add_u32 s50, s50, s53"); a("s_add_u32 s50, s50, s54"); a("s_and_b32 s50, s50, 15")
    else:
        a("s_mov_b32 s50, 0")
    a("s_waitcnt lgkmcnt(0)")
    a("s_lshl_b32 s10, s48, 18")
    a("s_add_u32 s16, s4, s10"); a("s_addc_u32 s17, s5, 0"); a("s_mov_b32 s18, %d" % (128 * 2048)); a("s_mov_b32 s19, 0x20000")
    a("s_lshl_b32 s10, s49, 7")
    a("s_add_u32 s20, s6, s10"); a("s_addc_u32 s21, s7, 0"); a("s_sub_u32 s22, %d, s10" % (1024 * 6144)); a("s_mov_b32 s23, 0x20000")
    a("s_mov_b32 s24, s8"); a("s_mov_b32 s25, s9"); a("s_mov_b32 s26, 65536"); a("s_mov_b32 s27, 0x20000")
    a("s_mov_b32 s28, s14"); a("s_mov_b32 s29, s15"); a("s_mov_b32 s30, 0x10000000"); a("s_mov_b32 s31, 0x20000")
    a("s_mov_b32 s36, s12"); a("s_mov_b32 s37, s13"); a("s_mov_b32 s38, 256"); a("s_mov_b32 s39, 0x20000")
    a("s_cmp_lt_u32 s3, 4")
    a("s_cbranch_scc1 L1_cons")
    a("s_sub_u32 s3, s3, 4")
    a("v_lshrrev_b32 v3, 3, v0")
    a("v_and_b32 v4, 7, v0")
    a("s_lshl_b32 s10, s3, 5")
    for j in range(4):
        a("v_add_u32 v5, s10, v3")
        if j: a("v_add_u32 v5, %d, v5" % (8 * j))
        a("v_lshrrev_b32 v6, 1, v5"); a("v_and_b32 v6, 7, v6"); a("v_xor_b32 v6, v6, v4")
        a("v_lshlrev_b32 v6, 4, v6")
        a("v_lshl_add_u32 v%d, v5, 11, v6" % (10 + j))
        if j: a("v_subrev_u32 v%d, %d, v%d" % (10 + j, 1024 * j, 10 + j))
    a("v_lshrrev_b32 v6, 4, v0"); a("v_and_b32 v6, 1, v6"); a("v_lshlrev_b32 v6, 2, v6"); a("v_xor_b32 v6, v6, v4")
    a("v_lshlrev_b32 v6, 4, v6")
    a("v_mul_u32_u24 v5, 6144, v3")
    a("v_add_u32 v6, v5, v6")
    for j in range(6):
        a("s_mul_i32 s10, s3, 6"); a("s_add_u32 s10, s10, %d" % j)
        a("s_lshr_b32 s11, s10, 3"); a("s_lshl_b32 s11, s11, 11")
        a("s_and_b32 s10, s10, 7"); a("s_mul_i32 s10, s10, %d" % (8 * 6144))
        a("s_add_u32 s10, s10, s11")
        a("s_add_u32 s10, s10, %d" % (4096 - 1024 * (j % 4)))
        a("v_add_u32 v%d, s10, v6" % (14 + j))
    a("s_sub_u32 s20, s20, 4096"); a("s_subb_u32 s21, s21, 0"); a("s_add_u32 s22, s22, 4096")
    a("s_lshl_b32 s55, s3, 12")
    a("s_mul_i32 s56, s3, 6144"); a("s_add_u32 s56, s56, 16384")
    a("s_mov_b32 s57, 0")
    def issue():
        a("s_lshl_b32 s58, s50, 7")
        a("s_mul_i32 s59, s50, %d" % (64 * 6144))
        a("s_add_u32 m0, s57, s55")
        a("s_add_u32 s50, s50, 1")
        for j in range(4):
            a("buffer_load_dwordx4 v%d, s[16:19], s58 offen offset:%d lds" % (10 + j, 1024 * j))
        a("s_add_u32 m0, s57, s56")
        a("s_and_b32 s50, s50, 15")
        for j in range(4):
            a("buffer_load_dwordx4 v%d, s[20:23], s59 offen offset:%d lds" % (14 + j, 1024 * j))
        a("s_add_u32 m0, m0, 4096")
        a("s_add_u32 s57, s57, %d" % SLOT)
        for j in range(4, 6):
            a("buffer_load_dwordx4 v%d, s[20:23], s59 offen offset:%d lds" % (14 + j, 1024 * (j - 4)))
        a("s_cmp_eq_u32 s57, %d" % (3 * SLOT))
        a("s_cselect_b32 s57, 0, s57")
    issue()
    issue()
    a("s_or_b32 s10, s2, s3")
    a("s_cmp_lg_u32 s10, 0")
    a("s_cbranch_scc1 L1_noleader")
    a("v_mov_b32 v20, 0")
    a("buffer_load_dword v22, v20, s[28:31], 0 offen sc1")
    a("s_waitcnt vmcnt(0)")
    a("v_add_u32 v22, 0x%x, v22" % TAGC)
    a("v_mov_b32 v23, 1")
    a("buffer_store_dword v22, v20, s[28:31], 0 offen sc1")
    a("buffer_store_dwordx2 v[22:23], v20, s[36:39], 0 offen sc1")
    a("s_waitcnt vmcnt(0)")
    a.label("L1_noleader")
    a("s_mov_b32 s61, 14")
    a.label("L1_lloop")
    a("s_waitcnt vmcnt(10)")
    a("s_barrier")
    issue()
    a("s_sub_u32 s61, s61, 1")
    a("s_cmp_lg_u32 s61, 0")
    a("s_cbranch_scc1 L1_lloop")
    a("s_waitcnt vmcnt(10)")
    a("s_barrier")
    a("s_waitcnt vmcnt(0)")
    a("s_barrier")
    a("s_barrier")
    a("s_cmp_lg_u32 s3, 0")
    a("s_cbranch_scc1 L1_end")
    a("v_mov_b32 v20, 0")
    get_tag(a, 22, 20)
    a("v_lshlrev_b32 v21, 4, v0")
    a("s_lshl_b32 s10, s49, 19"); a("s_lshl_b32 s11, s48, 15"); a("s_add_u32 s10, s10, s11"); a("s_add_u32 s10, s10, %d" % WS_P1)
    a("s_barrier")
    a("s_mov_b32 s45, 0")
    a.label("L1_rpoll")
    a("s_mov_b32 s11, s10")
    for i in range(8):
        for q in range(4):
            a("buffer_load_dwordx4 %s, v21, s[28:31], s11 offen offset:%d sc1" % (v(32 + 16 * i + 4 * q, 4), 1024 * q))
        if i < 7: a("s_add_u32 s11, s11, 4096")
    a("s_waitcnt vmcnt(0)")
    a("v_xor_b32 v24, s44, v35")
    for i in range(1, 32):
        a("v_xor_b32 v25, s44, v%d" % (35 + 4 * i))
        a("v_or_b32 v24, v24, v25")
    a("v_cmp_ne_u32 vcc, 0, v24")
    a("s_add_u32 s45, s45, 1")
    a("s_cmp_ge_u32 s45, %d" % SPIN)
    a("s_cbranch_scc1 L1_rgo")
    a("s_cbranch_vccnz L1_rpoll")
    a.label("L1_rgo")
    for step in (8, 4, 2, 1):
        for i in range(step):
            for q in range(2):
                d = 32 + 8 * i + 4 * q; sct = 32 + 8 * (i + step) + 4 * q
                a("v_pk_add_f32 %s, %s, %s" % (v(d, 2), v(d, 2), v(sct, 2)))
                a("v_add_f32 v%d, v%d, v%d" % (d + 2, d + 2, sct + 2))
    a("v_cvt_pk_bf16_f32 v24, v32, v33")
    a("v_cvt_pk_bf16_f32 v25, v36, v37")
    a("v_cvt_pk_bf16_f32 v26, v34, v38")
    a("v_mov_b32 v27, s44")
    a("s_lshl_b32 s10, s49, 14"); a("s_lshl_b32 s11, s48, 10"); a("s_add_u32 s10, s10, s11"); a("s_add_u32 s10, s10, %d" % WS_P2)
    a("buffer_store_dwordx4 v[24:27], v21, s[28:31], s10 offen sc1")
    a("s_endpgm")

    a.label("L1_cons")
    VA, VB, VAB, VBB = 10, 14, 15, 19
    WPHI, ONES = 20, 28
    F0, F1 = 32, 52
    AQ, AK, AV = 72, 104, 136
    a("s_lshr_b32 s51, s3, 1")
    a("s_and_b32 s52, s3, 1")
    a("v_and_b32 v1, 31, v0")
    a("v_lshrrev_b32 v2, 5, v0")
    a("s_lshl_b32 s53, s49, 1"); a("s_add_u32 s53, s53, s52")
    a("s_lshl_b32 s10, s53, 11")
    a("v_lshlrev_b32 v3, 8, v2"); a("v_lshl_add_u32 v3, v1, 1, v3")
    for ks in range(2):
        for i in range(8):
            d = 16 * ks + 8 * (i >> 2) + (i & 3)
            a("buffer_load_ushort v%d, v3, s[24:27], s10 offen offset:%d" % (168 + 8 * ks + i, d * 64))
    a("v_lshrrev_b32 v4, 1, v1"); a("v_and_b32 v4, 7, v4")
    a("s_lshl_b32 s10, s51, 13")
    a("v_lshlrev_b32 v5, 7, v1"); a("v_add_u32 v5, s10, v5")
    for ks in range(4):
        a("v_add_u32 v6, %d, v2" % (2 * ks)) if ks else a("v_mov_b32 v6, v2")
        a("v_xor_b32 v6, v6, v4")
        a("v_lshl_add_u32 v%d, v6, 4, v5" % (VAB + ks))
    a("v_bfe_u32 v4, v0, 2, 2")
    a("v_lshl_add_u32 v5, v2, 3, v4")
    a("v_lshlrev_b32 v5, 7, v5")
    a("v_bfe_u32 v6, v0, 4, 1"); a("v_lshlrev_b32 v6, 5, v6")
    a("v_and_b32 v7, 3, v0"); a("v_lshl_add_u32 v6, v7, 3, v6")
    a("s_lshl_b32 s10, s52, 6"); a("v_add_u32 v6, s10, v6")
    a("v_bfe_u32 v7, v0, 3, 1"); a("v_lshlrev_b32 v7, 6, v7")
    a("v_xor_b32 v6, v6, v7")
    a("v_add_u32 v%d, v5, v6" % VBB)
    for i in range(5):
        a("v_mov_b32 v%d, v%d" % (VA + i, VAB + i))
    for i in range(96):
        a("v_mov_b32 v%d, 0" % (AQ + i))
    for i in range(4):
        a("v_mov_b32 v%d, 0x3f803f80" % (ONES + i))
    a("s_mov_b32 s40, 0x%x" % LOG2E); a("s_mov_b32 s41, 0x%x" % LOG2E)
    a("s_mov_b32 s42, 0x%x" % (LOG2E | 0x80000000)); a("s_mov_b32 s43, 0x%x" % (LOG2E | 0x80000000))
    a("s_waitcnt vmcnt(0)")
    for j in range(8):
        a("v_lshl_or_b32 v%d, v%d, 16, v%d" % (WPHI + j, 168 + 2 * j + 1, 168 + 2 * j))
    a("s_mov_b32 s57, 0")
    a("s_mov_b32 s61, 16")

    def reads(F, ks):
        r = []
        r.append("ds_read_b128 %s, v%d" % (v(F, 4), VA + ks))
        for t in range(2): r.append("ds_read_b64_tr_b16 %s, v%d offset:%d" % (v(F + 8 + 2 * t, 2), VB, 16384 + ks * 2048 + t * 512))
        r.append("ds_read_b128 %s, v%d offset:4096" % (v(F + 4, 4), VA + ks))
        for seg in (1, 2):
            for t in range(2):
                r.append("ds_read_b64_tr_b16 %s, v%d offset:%d" % (v(F + 8 + 4 * seg + 2 * t, 2), VB, 16384 + seg * 8192 + ks * 2048 + t * 512))
        return r
    def mfmas(F):
        m = []
        for seg, AC in ((0, AQ), (1, AK), (2, AV)):
            for rt in range(2):
                A = v(F + 4 * rt, 4); B = v(F + 8 + 4 * seg, 4); C = v(AC + 16 * rt, 16)
                if seg < 2: m.append("v_mfma_f32_32x32x16_bf16 %s, %s, %s, %s" % (C, B, A, C))
                else:       m.append("v_mfma_f32_32x32x16_bf16 %s, %s, %s, %s" % (C, A, B, C))
        return m
    a("s_barrier")
    stamp(a, cfg, 1)
    for r in reads(F0, 0): a(r)
    a.label("L1_cloop")
    for ks in range(4):
        F = F0 if ks % 2 == 0 else F1
        N = F1 if ks % 2 == 0 else F0
        m = mfmas(F)
        if ks < 3:
            r = reads(N, ks + 1)
            a("s_waitcnt lgkmcnt(5)"); a(m[0]); a(r[0]); a(r[1])
            a("s_waitcnt lgkmcnt(6)"); a(m[1]); a(r[2]); a(r[3])
            a("s_waitcnt lgkmcnt(6)"); a(m[2]); a(r[4]); a(r[5])
            a(m[3]); a(r[6]); a(r[7])
            a("s_waitcnt lgkmcnt(8)"); a(m[4])
            a(m[5])
        else:
            r = reads(N, 0)
            a("s_waitcnt lgkmcnt(5)"); a(m[0])
            a("s_add_u32 s57, s57, %d" % SLOT)
            a("s_cmp_eq_u32 s57, %d" % (3 * SLOT))
            a("s_cselect_b32 s57, 0, s57")
            a("s_waitcnt lgkmcnt(4)"); a(m[1])
            for i in range(5): a("v_add_u32 v%d, s57, v%d" % (VA + i, VAB + i))
            a("s_waitcnt lgkmcnt(2)"); a(m[2])
            a("s_waitcnt lgkmcnt(0)")
            a("s_barrier")
            a(m[3]); a(r[0]); a(r[1]); a(r[2])
            a(m[4]); a(r[3]); a(r[4]); a(r[5])
            a("s_sub_u32 s61, s61, 1")
            a(m[5]); a(r[6]); a(r[7])
            a("s_cmp_lg_u32 s61, 0")
            a("s_cbranch_scc1 L1_cloop")
    stamp(a, cfg, 2)
    T, P, EP, EN, M = 168, 184, 200, 216, 232
    OUTK = 240
    a("v_mov_b32 v9, 0")
    a("buffer_load_dwordx2 v[6:7], v9, s[36:39], 0 offen sc1")
    a("s_mul_i32 s54, s3, 8704")
    a("v_mul_u32_u24 v3, 136, v1"); a("v_lshl_add_u32 v3, v2, 3, v3"); a("v_add_u32 v3, s54, v3")
    a("s_waitcnt lgkmcnt(0)")
    for rt in range(2):
        softmax_tile(a, cfg, AK + 16 * rt, OUTK, T, P, EP, EN, M, WPHI)
        for mt in range(2):
            for g in range(4):
                a("ds_write_b64 v3, %s offset:%d" % (v(OUTK + 8 * mt + 2 * g, 2), rt * 32 * 136 + mt * 64 + g * 16))
    for rt in range(2):
        for j in range(8):
            a("v_cvt_pk_bf16_f32 v%d, v%d, v%d" % (T + 8 * rt + j, AV + 16 * rt + 2 * j, AV + 16 * rt + 2 * j + 1))
    a("v_bfe_u32 v4, v0, 2, 2"); a("v_lshl_add_u32 v4, v2, 2, v4")
    a("v_mul_u32_u24 v4, 136, v4")
    a("v_bfe_u32 v5, v0, 4, 1"); a("v_lshl_add_u32 v4, v5, 5, v4")
    a("v_and_b32 v5, 3, v0"); a("v_lshl_add_u32 v4, v5, 3, v4")
    a("s_lshl_b32 s10, s51, 6"); a("s_add_u32 s11, s54, s10"); a("s_xor_b32 s10, s10, 64"); a("s_add_u32 s10, s54, s10")
    a("v_add_u32 v5, s10, v4")
    a("v_add_u32 v4, s11, v4")
    a("s_waitcnt lgkmcnt(0)")
    FR = 32
    for rt in range(2):
        for ks in range(2):
            for u in range(2):
                f = FR + 4 * (4 * rt + 2 * ks + u)
                for t in range(2):
                    a("ds_read_b64_tr_b16 %s, v%d offset:%d" % (v(f + 2 * t, 2), 4 + u, (32 * rt + 16 * ks + 8 * t) * 136))
    KV, ZZ = 104, 184
    n = 0
    for rt in range(2):
        for ks in range(2):
            for u in range(2):
                f = FR + 4 * (4 * rt + 2 * ks + u)
                a("s_waitcnt lgkmcnt(%d)" % (14 - 2 * n)); n += 1
                first = (rt == 0 and ks == 0)
                a("v_mfma_f32_32x32x16_bf16 %s, %s, %s, %s" % (v(KV + 16 * u, 16), v(f, 4), v(T + 8 * rt + 4 * ks, 4), "0" if first else v(KV + 16 * u, 16)))
                a("v_mfma_f32_32x32x16_bf16 %s, %s, %s, %s" % (v(ZZ + 16 * u, 16), v(f, 4), v(ONES, 4), "0" if first else v(ZZ + 16 * u, 16)))
    a("v_and_b32 v8, 1, v0"); a("v_cmp_eq_u32 vcc, 1, v8")
    ZS = 216
    for u in range(2):
        for g in range(4):
            a("v_cndmask_b32 v%d, v%d, v%d, vcc" % (ZS + 8 * u + 2 * g, ZZ + 16 * u + 4 * g, ZZ + 16 * u + 4 * g + 2))
            a("v_cndmask_b32 v%d, v%d, v%d, vcc" % (ZS + 8 * u + 2 * g + 1, ZZ + 16 * u + 4 * g + 1, ZZ + 16 * u + 4 * g + 3))
    a("v_lshlrev_b32 v8, 4, v0")
    a("s_mul_i32 s10, s3, 6144"); a("s_add_u32 s10, s10, 40960")
    a("v_add_u32 v4, s10, v8")
    a("s_xor_b32 s11, s3, 2"); a("s_mul_i32 s11, s11, 6144"); a("s_add_u32 s11, s11, 40960")
    a("v_add_u32 v5, s11, v8")
    for i in range(4):
        a("ds_write_b128 v4, %s offset:%d" % (v(KV + 16 + 4 * i, 4), 1024 * i))
    for i in range(2):
        a("ds_write_b128 v4, %s offset:%d" % (v(ZS + 8 + 4 * i, 4), 4096 + 1024 * i))
    a("s_waitcnt vmcnt(0)")
    a("v_readfirstlane_b32 s44, v6"); a("v_readfirstlane_b32 s46, v7")
    a("s_cmp_eq_u32 s46, 1")
    a("s_cbranch_scc1 L1_tagok")
    get_tag(a, 6, 9)
    a.label("L1_tagok")
    Q = 136
    for i in range(8):
        a("v_mov_b32 v%d, s44" % (Q + 4 * i + 3))
    a("s_waitcnt lgkmcnt(0)")
    a("s_barrier")
    R = 32
    for i in range(6):
        a("ds_read_b128 %s, v5 offset:%d" % (v(R + 4 * i, 4), 1024 * i))
    a("s_lshl_b32 s10, s49, 19"); a("s_lshl_b32 s11, s52, 1"); a("s_add_u32 s11, s11, s51"); a("s_lshl_b32 s11, s11, 17")
    a("s_add_u32 s10, s10, s11"); a("s_lshl_b32 s11, s48, 11"); a("s_add_u32 s10, s10, s11"); a("s_add_u32 s10, s10, %d" % WS_P1)
    a("s_waitcnt lgkmcnt(0)")
    for g in range(4):
        a("v_pk_add_f32 %s, %s, %s" % (v(Q + 8 * g, 2), v(KV + 4 * g, 2), v(R + 4 * g, 2)))
        a("v_pk_add_f32 %s, %s, %s" % (v(Q + 8 * g + 4, 2), v(KV + 4 * g + 2, 2), v(R + 4 * g + 2, 2)))
        a("v_add_f32 v%d, v%d, v%d" % (Q + 8 * g + 2, ZS + 2 * g, R + 16 + 2 * g))
        a("v_add_f32 v%d, v%d, v%d" % (Q + 8 * g + 6, ZS + 2 * g + 1, R + 16 + 2 * g + 1))
        a("buffer_store_dwordx4 %s, v8, s[28:31], s10 offen sc1" % v(Q + 8 * g, 4))
        a("buffer_store_dwordx4 %s, v8, s[28:31], s10 offen offset:1024 sc1" % v(Q + 8 * g + 4, 4))
        if g < 3: a("s_add_u32 s10, s10, 32768")
    stamp(a, cfg, 3)
    PQ = 104
    for rt in range(2):
        softmax_tile(a, cfg, AQ + 16 * rt, PQ + 16 * rt, T, P, EP, EN, M, WPHI)
    stamp(a, cfg, 4)
    a("s_lshl_b32 s10, s49, 14"); a("s_lshl_b32 s11, s52, 13"); a("s_add_u32 s10, s10, s11"); a("s_add_u32 s10, s10, %d" % WS_P2)
    a("s_add_u32 s11, s10, 4096")
    a("s_mov_b32 s45, 0")
    G = 32
    a.label("L1_p2poll")
    for mt in range(2):
        for g in range(4):
            a("buffer_load_dwordx4 %s, v8, s[28:31], s%d offen offset:%d sc1" % (v(G + 16 * mt + 4 * g, 4), 10 + mt, 1024 * g))
    a("s_waitcnt vmcnt(0)")
    a("v_xor_b32 v4, s44, v%d" % (G + 3))
    for i in range(1, 8):
        a("v_xor_b32 v5, s44, v%d" % (G + 4 * i + 3))
        a("v_or_b32 v4, v4, v5")
    a("v_cmp_ne_u32 vcc, 0, v4")
    a("s_add_u32 s45, s45, 1")
    a("s_cmp_ge_u32 s45, %d" % SPIN)
    a("s_cbranch_scc1 L1_p2go")
    a("s_cbranch_vccnz L1_p2poll")
    a.label("L1_p2go")
    stamp(a, cfg, 5)
    ZA = 72
    for mt in range(2):
        for g in range(4):
            q = G + 16 * mt + 4 * g
            a("v_mov_b32_dpp v%d, v%d quad_perm:[0,0,2,2] row_mask:0xf bank_mask:0xf" % (ZA + 8 * mt + 2 * g, q + 2))
            a("v_mov_b32_dpp v%d, v%d quad_perm:[1,1,3,3] row_mask:0xf bank_mask:0xf" % (ZA + 8 * mt + 2 * g + 1, q + 2))
    for mt in range(2):
        for ks in range(2):
            q = G + 16 * mt + 8 * ks
            a("v_mov_b32 v%d, v%d" % (q + 2, q + 4))
            a("v_mov_b32 v%d, v%d" % (q + 3, q + 5))
    NUM, DEN = 168, 200
    for rt in range(2):
        n = 0
        for mt in range(2):
            for ks in range(2):
                B = v(PQ + 16 * rt + 8 * mt + 4 * ks, 4)
                a("v_mfma_f32_32x32x16_bf16 %s, %s, %s, %s" % (v(DEN + 16 * rt, 16), v(ZA + 8 * mt + 4 * ks, 4), B, "0" if n == 0 else v(DEN + 16 * rt, 16)))
                a("v_mfma_f32_32x32x16_bf16 %s, %s, %s, %s" % (v(NUM + 16 * rt, 16), v(G + 16 * mt + 8 * ks, 4), B, "0" if n == 0 else v(NUM + 16 * rt, 16)))
                n += 1
    a("s_lshl_b32 s10, s48, 2"); a("s_lshl_b32 s11, s51, 1"); a("s_add_u32 s10, s10, s11")
    a("s_lshl_b32 s10, s10, 5"); a("s_add_u32 s10, s10, s53"); a("s_lshl_b32 s10, s10, 11"); a("s_add_u32 s10, s10, %d" % WS_O)
    a("s_mov_b32 s47, 0x358637bd")
    OP = 232
    for rt in range(2):
        d = DEN + 16 * rt; nu = NUM + 16 * rt
        if cfg.round_nd:
            a("v_cvt_pk_bf16_f32 v%d, v%d, v%d" % (d, d, d)); a("v_and_b32 v%d, 0xffff0000, v%d" % (d, d))
            a("v_add_f32 v%d, s47, v%d" % (d, d))
            a("v_cvt_pk_bf16_f32 v%d, v%d, v%d" % (d, d, d)); a("v_and_b32 v%d, 0xffff0000, v%d" % (d, d))
            for j in range(8):
                a("v_cvt_pk_bf16_f32 v%d, v%d, v%d" % (d + 2 + j, nu + 2 * j, nu + 2 * j + 1))
            for j in range(8):
                a("v_lshlrev_b32 v%d, 16, v%d" % (nu + 2 * j, d + 2 + j))
                a("v_and_b32 v%d, 0xffff0000, v%d" % (nu + 2 * j + 1, d + 2 + j))
        else:
            a("v_add_f32 v%d, s47, v%d" % (d, d))
        a("v_rcp_f32 v%d, v%d" % (d, d))
        for j in range(8):
            a("v_pk_mul_f32 %s, %s, %s op_sel_hi:[1,0]" % (v(nu + 2 * j, 2), v(nu + 2 * j, 2), v(d, 2)))
        for j in range(8):
            a("v_cvt_pk_bf16_f32 v%d, v%d, v%d" % (OP + 8 * rt + j, nu + 2 * j, nu + 2 * j + 1))
        a("buffer_store_dwordx4 %s, v8, s[28:31], s10 offen" % v(OP + 8 * rt, 4))
        a("buffer_store_dwordx4 %s, v8, s[28:31], s10 offen offset:1024" % v(OP + 8 * rt + 4, 4))
        if rt == 0: a("s_add_u32 s10, s10, 65536")
    if cfg.stamps:
        a("s_waitcnt vmcnt(0)")
        stamp(a, cfg, 6)
        a("s_cmp_lg_u32 s3, 0"); a("s_cbranch_scc1 L1_end")
        write_stamps(a, cfg, 7, "s2", "v0", 0)
    a.label("L1_end")
    a("s_endpgm")
    return a, name, (name, 256, 512, 3 * SLOT), kd(name, 256, 96, 256)

def gen_k2(cfg):
    a = Asm()
    name = "hh_k2_kernel"
    kernel_begin(a, name)
    a("s_cmp_ge_u32 s2, 256")
    a("s_cbranch_scc1 L2_end")
    a("s_load_dwordx4 s[4:7], s[0:1], 24")
    a("s_load_dwordx2 s[14:15], s[0:1], 48")
    stamp(a, cfg, 0)
    a("v_lshrrev_b32 v1, 6, v0")
    a("v_and_b32 v0, 63, v0")
    a("v_readfirstlane_b32 s3, v1")
    a("s_and_b32 s10, s2, 7"); a("s_lshr_b32 s11, s2, 3")
    a("s_and_b32 s48, s10, 3"); a("s_lshl_b32 s48, s48, 2"); a("s_and_b32 s12, s11, 3"); a("s_add_u32 s48, s48, s12")
    a("s_lshr_b32 s49, s10, 2"); a("s_lshl_b32 s49, s49, 3"); a("s_lshr_b32 s12, s11, 2"); a("s_add_u32 s49, s49, s12")
    a("s_and_b32 s51, s3, 3")
    a("s_lshr_b32 s52, s3, 2")
    a("s_waitcnt lgkmcnt(0)")
    a("s_lshl_b32 s10, s49, 7")
    a("s_add_u32 s20, s4, s10"); a("s_addc_u32 s21, s5, 0"); a("s_sub_u32 s22, %d, s10" % (1024 * 2048)); a("s_mov_b32 s23, 0x20000")
    a("s_mov_b32 s24, s6"); a("s_mov_b32 s25, s7"); a("s_mov_b32 s26, %d" % (2048 * 2048)); a("s_mov_b32 s27, 0x20000")
    a("s_mov_b32 s28, s14"); a("s_mov_b32 s29, s15"); a("s_mov_b32 s30, 0x10000000"); a("s_mov_b32 s31, 0x20000")
    a("v_lshrrev_b32 v3, 3, v0"); a("v_and_b32 v4, 7, v0")
    a("v_lshrrev_b32 v6, 4, v0"); a("v_and_b32 v6, 1, v6"); a("v_lshlrev_b32 v6, 2, v6"); a("v_xor_b32 v6, v6, v4")
    a("v_lshlrev_b32 v6, 4, v6")
    a("v_lshl_add_u32 v6, v3, 11, v6")
    for i in range(4):
        a("v_add_u32 v%d, %d, v6" % (10 + i, i * 8 * 2048 - i * 1024)) if i else a("v_mov_b32 v10, v6")
    a("s_lshl_b32 s53, s52, 9"); a("s_lshl_b32 s10, s51, 5"); a("s_add_u32 s53, s53, s10")
    a("s_lshl_b32 s54, s48, 2"); a("s_add_u32 s54, s54, s51"); a("s_lshl_b32 s54, s54, 5")
    a("s_lshl_b32 s10, s52, 4"); a("s_add_u32 s54, s54, s10"); a("s_lshl_b32 s54, s54, 11"); a("s_add_u32 s54, s54, %d" % WS_O)
    a("v_lshlrev_b32 v8, 4, v0")
    AF = 64
    for c in range(4):
        a("s_add_u32 s10, s53, %d" % (128 * c))
        a("s_lshl_b32 m0, s10, 7")
        a("s_lshl_b32 s11, s10, 11")
        for i in range(4):
            a("buffer_load_dwordx4 v%d, s[20:23], s11 offen offset:%d lds" % (10 + i, 1024 * i))
        for half in range(2):
            a("s_add_u32 s10, s54, %d" % (8192 * c + 4096 * half))
            for i in range(4):
                a("buffer_load_dwordx4 %s, v8, s[28:31], s10 offen offset:%d" % (v(AF + 32 * c + 16 * half + 4 * i, 4), 1024 * i))
    a("v_lshrrev_b32 v2, 5, v0")
    a("v_bfe_u32 v4, v0, 2, 2"); a("v_lshl_add_u32 v5, v2, 2, v4"); a("v_lshlrev_b32 v5, 7, v5")
    a("v_bfe_u32 v6, v0, 4, 1"); a("v_lshlrev_b32 v6, 5, v6")
    a("v_and_b32 v7, 3, v0"); a("v_lshl_add_u32 v6, v7, 3, v6")
    a("v_bfe_u32 v7, v0, 3, 1"); a("v_lshlrev_b32 v7, 6, v7")
    a("v_xor_b32 v6, v6, v7")
    a("s_lshl_b32 s10, s52, 16")
    a("v_add3_u32 v14, v5, v6, s10")
    a("v_xor_b32 v15, 64, v14")
    ACC = 32
    BF = 16
    def breads(ks, S):
        r = []
        for ct in range(2):
            for t in range(2):
                r.append("ds_read_b64_tr_b16 %s, v%d offset:%d" % (v(BF + 8 * S + 4 * ct + 2 * t, 2), 14 + ct, ks * 2048 + t * 1024))
        return r
    for c in range(4):
        a("s_waitcnt vmcnt(%d)" % (12 * (3 - c)))
        a("s_barrier")
        if c == 0: stamp(a, cfg, 1)
        for r in breads(8 * c, 0): a(r)
        for k in range(8):
            ks = 8 * c + k
            S = k & 1
            if k < 7:
                for r in breads(ks + 1, S ^ 1): a(r)
                a("s_waitcnt lgkmcnt(4)")
            else:
                a("s_waitcnt lgkmcnt(0)")
            for ct in range(2):
                C = v(ACC + 16 * ct, 16)
                a("v_mfma_f32_32x32x16_bf16 %s, %s, %s, %s" % (C, v(BF + 8 * S + 4 * ct, 4), v(AF + 4 * ks, 4), "0" if ks == 0 else C))
    stamp(a, cfg, 2)
    a("s_barrier")
    a("v_and_b32 v1, 31, v0")
    a("s_mul_i32 s10, s52, %d" % (128 * 272)); a("s_mul_i32 s11, s51, %d" % (32 * 272)); a("s_add_u32 s10, s10, s11")
    a("v_mul_u32_u24 v3, 272, v1"); a("v_lshl_add_u32 v3, v2, 4, v3"); a("v_add_u32 v3, s10, v3")
    for ct in range(2):
        for g in range(4):
            a("ds_write_b128 v3, %s offset:%d" % (v(ACC + 16 * ct + 4 * g, 4), 128 * ct + 32 * g))
    a("v_lshrrev_b32 v4, 3, v0"); a("v_and_b32 v5, 7, v0")
    a("s_lshl_b32 s10, s3, 4"); a("v_add_u32 v4, s10, v4")
    a("v_mul_u32_u24 v6, 272, v4"); a("v_lshl_add_u32 v6, v5, 5, v6")
    a("v_lshlrev_b32 v7, 11, v4"); a("v_lshl_add_u32 v7, v5, 4, v7")
    a("s_lshl_b32 s10, s48, 18"); a("s_lshl_b32 s11, s49, 7"); a("s_add_u32 s10, s10, s11")
    a("s_add_u32 s11, s10, %d" % (8 * 2048))
    a("s_waitcnt lgkmcnt(0)")
    a("s_barrier")
    R = 64
    for i in range(2):
        for kh in range(2):
            for j in range(2):
                a("ds_read_b128 %s, v6 offset:%d" % (v(R + 16 * i + 8 * kh + 4 * j, 4), i * 8 * 272 + kh * 128 * 272 + 16 * j))
    for i in range(2):
        a("s_waitcnt lgkmcnt(%d)" % (4 * (1 - i)))
        b = R + 16 * i
        for j in range(4):
            a("v_pk_add_f32 %s, %s, %s" % (v(b + 2 * j, 2), v(b + 2 * j, 2), v(b + 8 + 2 * j, 2)))
        for j in range(4):
            a("v_cvt_pk_bf16_f32 v%d, v%d, v%d" % (b + 8 + j, b + 2 * j, b + 2 * j + 1))
        a("buffer_store_dwordx4 %s, v7, s[24:27], s%d offen" % (v(b + 8, 4), 10 + i))
    if cfg.stamps:
        a("s_waitcnt vmcnt(0)")
        stamp(a, cfg, 3)
        for i in range(4, 7): stamp(a, cfg, i)
        a("s_cmp_lg_u32 s3, 0"); a("s_cbranch_scc1 L2_end")
        write_stamps(a, cfg, 7, "s2", "v0", 1)
    a.label("L2_end")
    a("s_endpgm")
    return a, name, (name, 256, 512, 131072), kd(name, 192, 96, 192)

def build(cfg, path):
    body = ""; launches = []; kds = []
    for g in (gen_k1, gen_k2):
        a, name, l, k = g(cfg)
        lines = hazard.fix(a.lines, verbose=True)
        pr = hazard.check_backedges(lines)
        for p in pr: print("BACKEDGE HAZARD:", p)
        body += "\n".join(lines) + "\n"
        launches.append(l); kds.append(k)
    open(path, "w").write(file_text(launches, body, kds))

if __name__ == "__main__":
    c = Cfg(); build(c, "v1.s")
    c = Cfg(); c.stamps = True; build(c, "v1_st.s")
```

```python
import sys
from asmlib import *
import hazard

LOG2E = 0x3fb8aa3b
WS_P1 = 0x100000
WS_P2 = 0xA00000
WS_O  = 0x1000000
WS_ST = 0x8000000
SLOT = 40960
TAGC = 0x9E3779B9
SPIN = 200000
NST = 14

class Cfg:
    stamps = False
    rot = True
    round_p = True
    round_nd = True
    no_mfma = False
    no_reads = False
    no_dma = False
    k1only = False
    stagest = False

def stamp(a, cfg, idx):
    if cfg.stamps:
        a("s_memrealtime s[%d:%d]" % (64 + 2 * idx, 65 + 2 * idx))

def write_stamps(a, cfg, n, rec_sgpr, lane_v, kidx):
    if not cfg.stamps: return
    a("s_waitcnt lgkmcnt(0)")
    a("s_mul_i32 s60, %s, %d" % (rec_sgpr, n * 8))
    a("s_add_u32 s60, s60, %d" % (WS_ST + kidx * 0x10000))
    a("v_mov_b32 v2, s60")
    a("v_cmp_eq_u32 vcc, 0, %s" % lane_v)
    a("s_and_saveexec_b64 s[62:63], vcc")
    for i in range(n):
        a("v_mov_b32 v4, s%d" % (64 + 2 * i)); a("v_mov_b32 v5, s%d" % (65 + 2 * i))
        a("buffer_store_dwordx2 v[4:5], v2, s[28:31], 0 offen offset:%d" % (8 * i))
        a("s_waitcnt vmcnt(0)")
    a("s_mov_b64 exec, s[62:63]")

def softmax_tile(a, cfg, ACC, OUT, T, P, EP, EN, M, WPHI):
    for j in range(8):
        a("v_cvt_pk_bf16_f32 v%d, v%d, v%d" % (T + j, ACC + 2 * j, ACC + 2 * j + 1))
    a("v_mfma_f32_32x32x16_bf16 %s, %s, %s, 0" % (v(P, 16), v(WPHI, 4), v(T, 4)))
    a("v_mfma_f32_32x32x16_bf16 %s, %s, %s, %s" % (v(P, 16), v(WPHI + 4, 4), v(T + 4, 4), v(P, 16)))
    if cfg.round_p:
        for j in range(8):
            a("v_cvt_pk_bf16_f32 v%d, v%d, v%d" % (T + j, P + 2 * j, P + 2 * j + 1))
        for j in range(8):
            a("v_lshlrev_b32 v%d, 16, v%d" % (P + 2 * j, T + j))
            a("v_and_b32 v%d, 0xffff0000, v%d" % (P + 2 * j + 1, T + j))
    mx, mn, t0, t1 = M, M + 2, M + 4, M + 6
    a("v_max3_f32 v%d, v%d, v%d, v%d" % (mx, P, P + 1, P + 2))
    a("v_min3_f32 v%d, v%d, v%d, v%d" % (mn, P, P + 1, P + 2))
    for i in range(3, 15, 2):
        a("v_max3_f32 v%d, v%d, v%d, v%d" % (mx, mx, P + i, P + i + 1))
        a("v_min3_f32 v%d, v%d, v%d, v%d" % (mn, mn, P + i, P + i + 1))
    a("v_max_f32 v%d, v%d, v%d" % (mx, mx, P + 15))
    a("v_min_f32 v%d, v%d, v%d" % (mn, mn, P + 15))
    a("v_mov_b32 v%d, v%d" % (t0, mx))
    a("v_mov_b32 v%d, v%d" % (t1, mn))
    a("v_permlane32_swap_b32 v%d, v%d" % (mx, t0))
    a("v_permlane32_swap_b32 v%d, v%d" % (mn, t1))
    a("v_max_f32 v%d, v%d, v%d" % (mx, mx, t0))
    a("v_min_f32 v%d, v%d, v%d" % (mn, mn, t1))
    a("v_mul_f32 v%d, s42, v%d" % (mx, mx))
    a("v_mul_f32 v%d, s40, v%d" % (mn, mn))
    for j in range(8):
        a("v_pk_fma_f32 %s, %s, s[40:41], %s op_sel_hi:[1,1,0]" % (v(EP + 2 * j, 2), v(P + 2 * j, 2), v(mx, 2)))
        a("v_pk_fma_f32 %s, %s, s[42:43], %s op_sel_hi:[1,1,0]" % (v(EN + 2 * j, 2), v(P + 2 * j, 2), v(mn, 2)))
    for i in range(16):
        a("v_exp_f32 v%d, v%d" % (EP + i, EP + i))
        a("v_exp_f32 v%d, v%d" % (EN + i, EN + i))
    for (E, S) in ((EP, P), (EN, P + 8)):
        for j in range(4):
            a("v_pk_add_f32 %s, %s, %s" % (v(S + 2 * j, 2), v(E + 4 * j, 2), v(E + 4 * j + 2, 2)))
    for S in (P, P + 8):
        a("v_pk_add_f32 %s, %s, %s" % (v(S, 2), v(S, 2), v(S + 2, 2)))
        a("v_pk_add_f32 %s, %s, %s" % (v(S + 4, 2), v(S + 4, 2), v(S + 6, 2)))
    for S in (P, P + 8):
        a("v_pk_add_f32 %s, %s, %s" % (v(S, 2), v(S, 2), v(S + 4, 2)))
    a("v_add_f32 v%d, v%d, v%d" % (mx, P, P + 1))
    a("v_add_f32 v%d, v%d, v%d" % (mn, P + 8, P + 9))
    a("v_mov_b32 v%d, v%d" % (t0, mx))
    a("v_mov_b32 v%d, v%d" % (t1, mn))
    a("v_permlane32_swap_b32 v%d, v%d" % (mx, t0))
    a("v_permlane32_swap_b32 v%d, v%d" % (mn, t1))
    a("v_add_f32 v%d, v%d, v%d" % (mx, mx, t0))
    a("v_add_f32 v%d, v%d, v%d" % (mn, mn, t1))
    a("v_rcp_f32 v%d, v%d" % (mx, mx))
    a("v_rcp_f32 v%d, v%d" % (mn, mn))
    for j in range(8):
        a("v_pk_mul_f32 %s, %s, %s op_sel_hi:[1,0]" % (v(EP + 2 * j, 2), v(EP + 2 * j, 2), v(mx, 2)))
        a("v_pk_mul_f32 %s, %s, %s op_sel_hi:[1,0]" % (v(EN + 2 * j, 2), v(EN + 2 * j, 2), v(mn, 2)))
    for j in range(8):
        a("v_cvt_pk_bf16_f32 v%d, v%d, v%d" % (OUT + j, EP + 2 * j, EP + 2 * j + 1))
        a("v_cvt_pk_bf16_f32 v%d, v%d, v%d" % (OUT + 8 + j, EN + 2 * j, EN + 2 * j + 1))

def get_tag(a, vt, zero_v):
    L = a.newlabel("L_tag"); D = a.newlabel("L_tagd")
    a("s_mov_b32 s45, 0")
    a.label(L)
    a("buffer_load_dwordx2 %s, v%d, s[36:39], 0 offen sc1" % (v(vt, 2), zero_v))
    a("s_waitcnt vmcnt(0)")
    a("v_readfirstlane_b32 s44, v%d" % vt)
    a("v_readfirstlane_b32 s46, v%d" % (vt + 1))
    a("s_cmp_eq_u32 s46, 1")
    a("s_cbranch_scc1 %s" % D)
    a("s_add_u32 s45, s45, 1")
    a("s_cmp_lt_u32 s45, %d" % SPIN)
    a("s_cbranch_scc1 %s" % L)
    a.label(D)

def gen_k1(cfg):
    a = Asm()
    name = "hh_k1_kernel"
    kernel_begin(a, name)
    a("s_cmp_ge_u32 s2, 256")
    a("s_cbranch_scc1 L1_end")
    a("s_load_dwordx4 s[4:7], s[0:1], 0")
    a("s_load_dwordx2 s[8:9], s[0:1], 16")
    a("s_load_dwordx4 s[12:15], s[0:1], 40")
    stamp(a, cfg, 0)
    a("v_lshrrev_b32 v1, 6, v0")
    a("v_and_b32 v0, 63, v0")
    a("v_readfirstlane_b32 s3, v1")
    a("s_and_b32 s10, s2, 7"); a("s_lshr_b32 s11, s2, 3")
    a("s_and_b32 s51, s10, 1"); a("s_lshr_b32 s52, s10, 1")
    a("s_and_b32 s53, s11, 7"); a("s_lshr_b32 s54, s11, 3")
    a("s_lshl_b32 s48, s51, 3"); a("s_add_u32 s48, s48, s53")
    a("s_lshl_b32 s49, s52, 2"); a("s_add_u32 s49, s49, s54")
    if cfg.rot:
        a("s_add_u32 s50, s51, s52"); a("s_and_b32 s50, s50, 3")
        a("s_lshl_b32 s53, s53, 1"); a("s_lshl_b32 s54, s54, 2")
        a("s_add_u32 s50, s50, s53"); a("s_add_u32 s50, s50, s54"); a("s_and_b32 s50, s50, 15")
    else:
        a("s_mov_b32 s50, 0")
    a("s_waitcnt lgkmcnt(0)")
    a("s_lshl_b32 s10, s48, 18")
    a("s_add_u32 s16, s4, s10"); a("s_addc_u32 s17, s5, 0"); a("s_mov_b32 s18, %d" % (128 * 2048)); a("s_mov_b32 s19, 0x20000")
    a("s_lshl_b32 s10, s49, 7")
    a("s_add_u32 s20, s6, s10"); a("s_addc_u32 s21, s7, 0"); a("s_sub_u32 s22, %d, s10" % (1024 * 6144)); a("s_mov_b32 s23, 0x20000")
    a("s_mov_b32 s24, s8"); a("s_mov_b32 s25, s9"); a("s_mov_b32 s26, 65536"); a("s_mov_b32 s27, 0x20000")
    a("s_mov_b32 s28, s14"); a("s_mov_b32 s29, s15"); a("s_mov_b32 s30, 0x10000000"); a("s_mov_b32 s31, 0x20000")
    a("s_mov_b32 s36, s12"); a("s_mov_b32 s37, s13"); a("s_mov_b32 s38, 256"); a("s_mov_b32 s39, 0x20000")
    a("s_cmp_lt_u32 s3, 4")
    a("s_cbranch_scc1 L1_cons")
    a("s_sub_u32 s3, s3, 4")
    a("v_lshrrev_b32 v3, 3, v0")
    a("v_and_b32 v4, 7, v0")
    a("s_lshl_b32 s10, s3, 5")
    for j in range(4):
        a("v_add_u32 v5, s10, v3")
        if j: a("v_add_u32 v5, %d, v5" % (8 * j))
        a("v_lshrrev_b32 v6, 1, v5"); a("v_and_b32 v6, 7, v6"); a("v_xor_b32 v6, v6, v4")
        a("v_lshlrev_b32 v6, 4, v6")
        a("v_lshl_add_u32 v%d, v5, 11, v6" % (10 + j))
        if j: a("v_subrev_u32 v%d, %d, v%d" % (10 + j, 1024 * j, 10 + j))
    a("v_lshrrev_b32 v6, 4, v0"); a("v_and_b32 v6, 1, v6"); a("v_lshlrev_b32 v6, 2, v6"); a("v_xor_b32 v6, v6, v4")
    a("v_lshlrev_b32 v6, 4, v6")
    a("v_mul_u32_u24 v5, 6144, v3")
    a("v_add_u32 v6, v5, v6")
    for j in range(6):
        a("s_mul_i32 s10, s3, 6"); a("s_add_u32 s10, s10, %d" % j)
        a("s_lshr_b32 s11, s10, 3"); a("s_lshl_b32 s11, s11, 11")
        a("s_and_b32 s10, s10, 7"); a("s_mul_i32 s10, s10, %d" % (8 * 6144))
        a("s_add_u32 s10, s10, s11")
        a("s_add_u32 s10, s10, %d" % (4096 - 1024 * (j % 4)))
        a("v_add_u32 v%d, s10, v6" % (14 + j))
    a("s_sub_u32 s20, s20, 4096"); a("s_subb_u32 s21, s21, 0"); a("s_add_u32 s22, s22, 4096")
    a("s_lshl_b32 s55, s3, 12")
    a("s_mul_i32 s56, s3, 6144"); a("s_add_u32 s56, s56, 16384")
    a("s_mov_b32 s57, 0")
    def issue():
        if cfg.no_dma: return
        a("s_lshl_b32 s58, s50, 7")
        a("s_mul_i32 s59, s50, %d" % (64 * 6144))
        a("s_add_u32 m0, s57, s55")
        a("s_add_u32 s50, s50, 1")
        for j in range(4):
            a("buffer_load_dwordx4 v%d, s[16:19], s58 offen offset:%d lds" % (10 + j, 1024 * j))
        a("s_add_u32 m0, s57, s56")
        a("s_and_b32 s50, s50, 15")
        for j in range(4):
            a("buffer_load_dwordx4 v%d, s[20:23], s59 offen offset:%d lds" % (14 + j, 1024 * j))
        a("s_add_u32 m0, m0, 4096")
        a("s_add_u32 s57, s57, %d" % SLOT)
        for j in range(4, 6):
            a("buffer_load_dwordx4 v%d, s[20:23], s59 offen offset:%d lds" % (14 + j, 1024 * (j - 4)))
        a("s_cmp_eq_u32 s57, %d" % (3 * SLOT))
        a("s_cselect_b32 s57, 0, s57")
    stamp(a, cfg, 1)
    issue()
    stamp(a, cfg, 2)
    issue()
    stamp(a, cfg, 3)
    a("s_or_b32 s10, s2, s3")
    a("s_cmp_lg_u32 s10, 0")
    a("s_cbranch_scc1 L1_noleader")
    a("v_mov_b32 v20, 0")
    a("buffer_load_dword v22, v20, s[28:31], 0 offen sc1")
    a("s_waitcnt vmcnt(0)")
    a("v_add_u32 v22, 0x%x, v22" % TAGC)
    a("v_mov_b32 v23, 1")
    a("buffer_store_dword v22, v20, s[28:31], 0 offen sc1")
    a("buffer_store_dwordx2 v[22:23], v20, s[36:39], 0 offen sc1")
    a("s_waitcnt vmcnt(0)")
    a.label("L1_noleader")
    a("s_mov_b32 s61, 14")
    a.label("L1_lloop")
    a("s_waitcnt vmcnt(10)")
    a("s_barrier")
    issue()
    a("s_sub_u32 s61, s61, 1")
    a("s_cmp_lg_u32 s61, 0")
    a("s_cbranch_scc1 L1_lloop")
    a("s_waitcnt vmcnt(10)")
    a("s_barrier")
    a("s_waitcnt vmcnt(0)")
    stamp(a, cfg, 4)
    a("s_barrier")
    a("s_barrier")
    a("s_cmp_lg_u32 s3, 0")
    a("s_cbranch_scc1 L1_end")
    a("v_mov_b32 v20, 0")
    stamp(a, cfg, 5)
    get_tag(a, 22, 20)
    stamp(a, cfg, 6)
    a("v_lshlrev_b32 v21, 4, v0")
    a("s_lshl_b32 s10, s49, 19"); a("s_lshl_b32 s11, s48, 15"); a("s_add_u32 s10, s10, s11"); a("s_add_u32 s10, s10, %d" % WS_P1)
    a("s_barrier")
    stamp(a, cfg, 7)
    a("s_mov_b32 s45, 0")
    a.label("L1_rpoll")
    a("s_mov_b32 s11, s10")
    for i in range(8):
        for q in range(4):
            a("buffer_load_dwordx4 %s, v21, s[28:31], s11 offen offset:%d sc1" % (v(32 + 16 * i + 4 * q, 4), 1024 * q))
        if i < 7: a("s_add_u32 s11, s11, 4096")
    a("s_waitcnt vmcnt(0)")
    a("v_xor_b32 v24, s44, v35")
    for i in range(1, 32):
        a("v_xor_b32 v25, s44, v%d" % (35 + 4 * i))
        a("v_or_b32 v24, v24, v25")
    a("v_cmp_ne_u32 vcc, 0, v24")
    a("s_add_u32 s45, s45, 1")
    a("s_cmp_ge_u32 s45, %d" % SPIN)
    a("s_cbranch_scc1 L1_rgo")
    a("s_cbranch_vccnz L1_rpoll")
    a.label("L1_rgo")
    stamp(a, cfg, 8)
    for step in (8, 4, 2, 1):
        for i in range(step):
            for q in range(2):
                d = 32 + 8 * i + 4 * q; sct = 32 + 8 * (i + step) + 4 * q
                a("v_pk_add_f32 %s, %s, %s" % (v(d, 2), v(d, 2), v(sct, 2)))
                a("v_add_f32 v%d, v%d, v%d" % (d + 2, d + 2, sct + 2))
    a("v_cvt_pk_bf16_f32 v24, v32, v33")
    a("v_cvt_pk_bf16_f32 v25, v36, v37")
    a("v_cvt_pk_bf16_f32 v26, v34, v38")
    a("v_mov_b32 v27, s44")
    a("s_lshl_b32 s10, s49, 14"); a("s_lshl_b32 s11, s48, 10"); a("s_add_u32 s10, s10, s11"); a("s_add_u32 s10, s10, %d" % WS_P2)
    a("buffer_store_dwordx4 v[24:27], v21, s[28:31], s10 offen sc1")
    if cfg.stamps:
        stamp(a, cfg, 9)
        a("s_waitcnt vmcnt(0)")
        stamp(a, cfg, 10)
        a("s_waitcnt lgkmcnt(0)")
        a("s_mov_b32 s86, s45"); a("s_mov_b32 s87, 0")
        a("s_add_u32 s86, s86, s64"); a("s_addc_u32 s87, s87, s65")
        for i in range(12, NST): stamp(a, cfg, i)
        write_stamps(a, cfg, NST, "s2", "v0", 2)
    a("s_endpgm")

    a.label("L1_cons")
    VA, VB, VAB, VBB = 10, 14, 15, 19
    WPHI, ONES = 20, 28
    F0, F1 = 32, 52
    AQ, AK, AV = 72, 104, 136
    a("s_lshr_b32 s51, s3, 1")
    a("s_and_b32 s52, s3, 1")
    a("v_and_b32 v1, 31, v0")
    a("v_lshrrev_b32 v2, 5, v0")
    a("s_lshl_b32 s53, s49, 1"); a("s_add_u32 s53, s53, s52")
    a("s_lshl_b32 s10, s53, 11")
    a("v_lshlrev_b32 v3, 8, v2"); a("v_lshl_add_u32 v3, v1, 1, v3")
    for ks in range(2):
        for i in range(8):
            d = 16 * ks + 8 * (i >> 2) + (i & 3)
            a("buffer_load_ushort v%d, v3, s[24:27], s10 offen offset:%d" % (168 + 8 * ks + i, d * 64))
    a("v_lshrrev_b32 v4, 1, v1"); a("v_and_b32 v4, 7, v4")
    a("s_lshl_b32 s10, s51, 13")
    a("v_lshlrev_b32 v5, 7, v1"); a("v_add_u32 v5, s10, v5")
    for ks in range(4):
        a("v_add_u32 v6, %d, v2" % (2 * ks)) if ks else a("v_mov_b32 v6, v2")
        a("v_xor_b32 v6, v6, v4")
        a("v_lshl_add_u32 v%d, v6, 4, v5" % (VAB + ks))
    a("v_bfe_u32 v4, v0, 2, 2")
    a("v_lshl_add_u32 v5, v2, 3, v4")
    a("v_lshlrev_b32 v5, 7, v5")
    a("v_bfe_u32 v6, v0, 4, 1"); a("v_lshlrev_b32 v6, 5, v6")
    a("v_and_b32 v7, 3, v0"); a("v_lshl_add_u32 v6, v7, 3, v6")
    a("s_lshl_b32 s10, s52, 6"); a("v_add_u32 v6, s10, v6")
    a("v_bfe_u32 v7, v0, 3, 1"); a("v_lshlrev_b32 v7, 6, v7")
    a("v_xor_b32 v6, v6, v7")
    a("v_add_u32 v%d, v5, v6" % VBB)
    for i in range(5):
        a("v_mov_b32 v%d, v%d" % (VA + i, VAB + i))
    for i in range(96):
        a("v_mov_b32 v%d, 0" % (AQ + i))
    for i in range(4):
        a("v_mov_b32 v%d, 0x3f803f80" % (ONES + i))
    a("s_mov_b32 s40, 0x%x" % LOG2E); a("s_mov_b32 s41, 0x%x" % LOG2E)
    a("s_mov_b32 s42, 0x%x" % (LOG2E | 0x80000000)); a("s_mov_b32 s43, 0x%x" % (LOG2E | 0x80000000))
    stamp(a, cfg, 1)
    a("s_waitcnt vmcnt(0)")
    stamp(a, cfg, 2)
    for j in range(8):
        a("v_lshl_or_b32 v%d, v%d, 16, v%d" % (WPHI + j, 168 + 2 * j + 1, 168 + 2 * j))
    a("s_mov_b32 s57, 0")
    a("s_mov_b32 s61, 16")

    def reads(F, ks):
        r = []
        r.append("ds_read_b128 %s, v%d" % (v(F, 4), VA + ks))
        for t in range(2): r.append("ds_read_b64_tr_b16 %s, v%d offset:%d" % (v(F + 8 + 2 * t, 2), VB, 16384 + ks * 2048 + t * 512))
        r.append("ds_read_b128 %s, v%d offset:4096" % (v(F + 4, 4), VA + ks))
        for seg in (1, 2):
            for t in range(2):
                r.append("ds_read_b64_tr_b16 %s, v%d offset:%d" % (v(F + 8 + 4 * seg + 2 * t, 2), VB, 16384 + seg * 8192 + ks * 2048 + t * 512))
        if cfg.no_reads: r = ["s_nop 0"] * 8
        return r
    def mfmas(F):
        m = []
        for seg, AC in ((0, AQ), (1, AK), (2, AV)):
            for rt in range(2):
                A = v(F + 4 * rt, 4); B = v(F + 8 + 4 * seg, 4); C = v(AC + 16 * rt, 16)
                if seg < 2: m.append("v_mfma_f32_32x32x16_bf16 %s, %s, %s, %s" % (C, B, A, C))
                else:       m.append("v_mfma_f32_32x32x16_bf16 %s, %s, %s, %s" % (C, A, B, C))
        if cfg.no_mfma: m = ["s_nop 0"] * 6
        return m
    a("s_barrier")
    stamp(a, cfg, 3)
    if cfg.stamps: a("s_memtime s[96:97]")
    for r in reads(F0, 0): a(r)
    a.label("L1_cloop")
    for ks in range(4):
        F = F0 if ks % 2 == 0 else F1
        N = F1 if ks % 2 == 0 else F0
        m = mfmas(F)
        if ks < 3:
            r = reads(N, ks + 1)
            a("s_waitcnt lgkmcnt(5)"); a(m[0]); a(r[0]); a(r[1])
            a("s_waitcnt lgkmcnt(6)"); a(m[1]); a(r[2]); a(r[3])
            a("s_waitcnt lgkmcnt(6)"); a(m[2]); a(r[4]); a(r[5])
            a(m[3]); a(r[6]); a(r[7])
            a("s_waitcnt lgkmcnt(8)"); a(m[4])
            a(m[5])
        else:
            r = reads(N, 0)
            a("s_waitcnt lgkmcnt(5)"); a(m[0])
            a("s_add_u32 s57, s57, %d" % SLOT)
            a("s_cmp_eq_u32 s57, %d" % (3 * SLOT))
            a("s_cselect_b32 s57, 0, s57")
            a("s_waitcnt lgkmcnt(4)"); a(m[1])
            for i in range(5): a("v_add_u32 v%d, s57, v%d" % (VA + i, VAB + i))
            a("s_waitcnt lgkmcnt(2)"); a(m[2])
            a("s_waitcnt lgkmcnt(0)")
            a("s_barrier")
            if cfg.stagest:
                a("s_memrealtime s[92:93]"); a("s_memtime s[94:95]")
                a("s_waitcnt lgkmcnt(0)")
                a("s_mov_b32 m0, s61"); a("v_writelane_b32 v250, s92, m0"); a("v_writelane_b32 v251, s94, m0")
            a(m[3]); a(r[0]); a(r[1]); a(r[2])
            a(m[4]); a(r[3]); a(r[4]); a(r[5])
            a("s_sub_u32 s61, s61, 1")
            a(m[5]); a(r[6]); a(r[7])
            a("s_cmp_lg_u32 s61, 0")
            a("s_cbranch_scc1 L1_cloop")
    stamp(a, cfg, 4)
    if cfg.stamps:
        a("s_memtime s[98:99]")
        a("s_waitcnt lgkmcnt(0)")
        a("s_sub_u32 s98, s98, s96"); a("s_subb_u32 s99, s99, s97")
        a("s_add_u32 s68, s98, s64"); a("s_addc_u32 s69, s99, s65")
    if cfg.stagest:
        a("s_cmp_lg_u32 s3, 0"); a("s_cbranch_scc1 L1_nost")
        a("s_lshl_b32 s10, s2, 9"); a("s_add_u32 s10, s10, %d" % (WS_ST + 0x100000))
        a("v_lshlrev_b32 v249, 3, v0")
        a("buffer_store_dwordx2 v[250:251], v249, s[28:31], s10 offen")
        a("s_waitcnt vmcnt(0)")
        a.label("L1_nost")
    T, P, EP, EN, M = 168, 184, 200, 216, 232
    OUTK = 240
    a("v_mov_b32 v9, 0")
    a("buffer_load_dwordx2 v[6:7], v9, s[36:39], 0 offen sc1")
    a("s_mul_i32 s54, s3, 8704")
    a("v_mul_u32_u24 v3, 136, v1"); a("v_lshl_add_u32 v3, v2, 3, v3"); a("v_add_u32 v3, s54, v3")
    a("s_waitcnt lgkmcnt(0)")
    for rt in range(2):
        softmax_tile(a, cfg, AK + 16 * rt, OUTK, T, P, EP, EN, M, WPHI)
        for mt in range(2):
            for g in range(4):
                a("ds_write_b64 v3, %s offset:%d" % (v(OUTK + 8 * mt + 2 * g, 2), rt * 32 * 136 + mt * 64 + g * 16))
    stamp(a, cfg, 5)
    for rt in range(2):
        for j in range(8):
            a("v_cvt_pk_bf16_f32 v%d, v%d, v%d" % (T + 8 * rt + j, AV + 16 * rt + 2 * j, AV + 16 * rt + 2 * j + 1))
    a("v_bfe_u32 v4, v0, 2, 2"); a("v_lshl_add_u32 v4, v2, 2, v4")
    a("v_mul_u32_u24 v4, 136, v4")
    a("v_bfe_u32 v5, v0, 4, 1"); a("v_lshl_add_u32 v4, v5, 5, v4")
    a("v_and_b32 v5, 3, v0"); a("v_lshl_add_u32 v4, v5, 3, v4")
    a("s_lshl_b32 s10, s51, 6"); a("s_add_u32 s11, s54, s10"); a("s_xor_b32 s10, s10, 64"); a("s_add_u32 s10, s54, s10")
    a("v_add_u32 v5, s10, v4")
    a("v_add_u32 v4, s11, v4")
    a("s_waitcnt lgkmcnt(0)")
    FR = 32
    for rt in range(2):
        for ks in range(2):
            for u in range(2):
                f = FR + 4 * (4 * rt + 2 * ks + u)
                for t in range(2):
                    a("ds_read_b64_tr_b16 %s, v%d offset:%d" % (v(f + 2 * t, 2), 4 + u, (32 * rt + 16 * ks + 8 * t) * 136))
    KV, ZZ = 104, 184
    n = 0
    for rt in range(2):
        for ks in range(2):
            for u in range(2):
                f = FR + 4 * (4 * rt + 2 * ks + u)
                a("s_waitcnt lgkmcnt(%d)" % (14 - 2 * n)); n += 1
                first = (rt == 0 and ks == 0)
                a("v_mfma_f32_32x32x16_bf16 %s, %s, %s, %s" % (v(KV + 16 * u, 16), v(f, 4), v(T + 8 * rt + 4 * ks, 4), "0" if first else v(KV + 16 * u, 16)))
                a("v_mfma_f32_32x32x16_bf16 %s, %s, %s, %s" % (v(ZZ + 16 * u, 16), v(f, 4), v(ONES, 4), "0" if first else v(ZZ + 16 * u, 16)))
    a("v_and_b32 v8, 1, v0"); a("v_cmp_eq_u32 vcc, 1, v8")
    ZS = 216
    for u in range(2):
        for g in range(4):
            a("v_cndmask_b32 v%d, v%d, v%d, vcc" % (ZS + 8 * u + 2 * g, ZZ + 16 * u + 4 * g, ZZ + 16 * u + 4 * g + 2))
            a("v_cndmask_b32 v%d, v%d, v%d, vcc" % (ZS + 8 * u + 2 * g + 1, ZZ + 16 * u + 4 * g + 1, ZZ + 16 * u + 4 * g + 3))
    a("v_lshlrev_b32 v8, 4, v0")
    a("s_mul_i32 s10, s3, 6144"); a("s_add_u32 s10, s10, 40960")
    a("v_add_u32 v4, s10, v8")
    a("s_xor_b32 s11, s3, 2"); a("s_mul_i32 s11, s11, 6144"); a("s_add_u32 s11, s11, 40960")
    a("v_add_u32 v5, s11, v8")
    for i in range(4):
        a("ds_write_b128 v4, %s offset:%d" % (v(KV + 16 + 4 * i, 4), 1024 * i))
    for i in range(2):
        a("ds_write_b128 v4, %s offset:%d" % (v(ZS + 8 + 4 * i, 4), 4096 + 1024 * i))
    stamp(a, cfg, 6)
    a("s_waitcnt vmcnt(0)")
    stamp(a, cfg, 7)
    a("v_readfirstlane_b32 s44, v6"); a("v_readfirstlane_b32 s46, v7")
    a("s_cmp_eq_u32 s46, 1")
    a("s_cbranch_scc1 L1_tagok")
    get_tag(a, 6, 9)
    a.label("L1_tagok")
    Q = 136
    for i in range(8):
        a("v_mov_b32 v%d, s44" % (Q + 4 * i + 3))
    a("s_waitcnt lgkmcnt(0)")
    a("s_barrier")
    stamp(a, cfg, 8)
    R = 32
    for i in range(6):
        a("ds_read_b128 %s, v5 offset:%d" % (v(R + 4 * i, 4), 1024 * i))
    a("s_lshl_b32 s10, s49, 19"); a("s_lshl_b32 s11, s52, 1"); a("s_add_u32 s11, s11, s51"); a("s_lshl_b32 s11, s11, 17")
    a("s_add_u32 s10, s10, s11"); a("s_lshl_b32 s11, s48, 11"); a("s_add_u32 s10, s10, s11"); a("s_add_u32 s10, s10, %d" % WS_P1)
    a("s_waitcnt lgkmcnt(0)")
    for g in range(4):
        a("v_pk_add_f32 %s, %s, %s" % (v(Q + 8 * g, 2), v(KV + 4 * g, 2), v(R + 4 * g, 2)))
        a("v_pk_add_f32 %s, %s, %s" % (v(Q + 8 * g + 4, 2), v(KV + 4 * g + 2, 2), v(R + 4 * g + 2, 2)))
        a("v_add_f32 v%d, v%d, v%d" % (Q + 8 * g + 2, ZS + 2 * g, R + 16 + 2 * g))
        a("v_add_f32 v%d, v%d, v%d" % (Q + 8 * g + 6, ZS + 2 * g + 1, R + 16 + 2 * g + 1))
        a("buffer_store_dwordx4 %s, v8, s[28:31], s10 offen sc1" % v(Q + 8 * g, 4))
        a("buffer_store_dwordx4 %s, v8, s[28:31], s10 offen offset:1024 sc1" % v(Q + 8 * g + 4, 4))
        if g < 3: a("s_add_u32 s10, s10, 32768")
    stamp(a, cfg, 9)
    PQ = 104
    for rt in range(2):
        softmax_tile(a, cfg, AQ + 16 * rt, PQ + 16 * rt, T, P, EP, EN, M, WPHI)
    stamp(a, cfg, 10)
    a("s_lshl_b32 s10, s49, 14"); a("s_lshl_b32 s11, s52, 13"); a("s_add_u32 s10, s10, s11"); a("s_add_u32 s10, s10, %d" % WS_P2)
    a("s_add_u32 s11, s10, 4096")
    a("s_mov_b32 s45, 0")
    G = 32
    a.label("L1_p2poll")
    for mt in range(2):
        for g in range(4):
            a("buffer_load_dwordx4 %s, v8, s[28:31], s%d offen offset:%d sc1" % (v(G + 16 * mt + 4 * g, 4), 10 + mt, 1024 * g))
    a("s_waitcnt vmcnt(0)")
    a("v_xor_b32 v4, s44, v%d" % (G + 3))
    for i in range(1, 8):
        a("v_xor_b32 v5, s44, v%d" % (G + 4 * i + 3))
        a("v_or_b32 v4, v4, v5")
    a("v_cmp_ne_u32 vcc, 0, v4")
    a("s_add_u32 s45, s45, 1")
    a("s_cmp_ge_u32 s45, %d" % SPIN)
    a("s_cbranch_scc1 L1_p2go")
    a("s_cbranch_vccnz L1_p2poll")
    a.label("L1_p2go")
    stamp(a, cfg, 11)
    ZA = 72
    for mt in range(2):
        for g in range(4):
            q = G + 16 * mt + 4 * g
            a("v_mov_b32_dpp v%d, v%d quad_perm:[0,0,2,2] row_mask:0xf bank_mask:0xf" % (ZA + 8 * mt + 2 * g, q + 2))
            a("v_mov_b32_dpp v%d, v%d quad_perm:[1,1,3,3] row_mask:0xf bank_mask:0xf" % (ZA + 8 * mt + 2 * g + 1, q + 2))
    for mt in range(2):
        for ks in range(2):
            q = G + 16 * mt + 8 * ks
            a("v_mov_b32 v%d, v%d" % (q + 2, q + 4))
            a("v_mov_b32 v%d, v%d" % (q + 3, q + 5))
    NUM, DEN = 168, 200
    for rt in range(2):
        n = 0
        for mt in range(2):
            for ks in range(2):
                B = v(PQ + 16 * rt + 8 * mt + 4 * ks, 4)
                a("v_mfma_f32_32x32x16_bf16 %s, %s, %s, %s" % (v(DEN + 16 * rt, 16), v(ZA + 8 * mt + 4 * ks, 4), B, "0" if n == 0 else v(DEN + 16 * rt, 16)))
                a("v_mfma_f32_32x32x16_bf16 %s, %s, %s, %s" % (v(NUM + 16 * rt, 16), v(G + 16 * mt + 8 * ks, 4), B, "0" if n == 0 else v(NUM + 16 * rt, 16)))
                n += 1
    a("s_lshl_b32 s10, s48, 2"); a("s_lshl_b32 s11, s51, 1"); a("s_add_u32 s10, s10, s11")
    a("s_lshl_b32 s10, s10, 5"); a("s_add_u32 s10, s10, s53"); a("s_lshl_b32 s10, s10, 11"); a("s_add_u32 s10, s10, %d" % WS_O)
    a("s_mov_b32 s47, 0x358637bd")
    OP = 232
    for rt in range(2):
        d = DEN + 16 * rt; nu = NUM + 16 * rt
        if cfg.round_nd:
            a("v_cvt_pk_bf16_f32 v%d, v%d, v%d" % (d, d, d)); a("v_and_b32 v%d, 0xffff0000, v%d" % (d, d))
            a("v_add_f32 v%d, s47, v%d" % (d, d))
            a("v_cvt_pk_bf16_f32 v%d, v%d, v%d" % (d, d, d)); a("v_and_b32 v%d, 0xffff0000, v%d" % (d, d))
            for j in range(8):
                a("v_cvt_pk_bf16_f32 v%d, v%d, v%d" % (d + 2 + j, nu + 2 * j, nu + 2 * j + 1))
            for j in range(8):
                a("v_lshlrev_b32 v%d, 16, v%d" % (nu + 2 * j, d + 2 + j))
                a("v_and_b32 v%d, 0xffff0000, v%d" % (nu + 2 * j + 1, d + 2 + j))
        else:
            a("v_add_f32 v%d, s47, v%d" % (d, d))
        a("v_rcp_f32 v%d, v%d" % (d, d))
        for j in range(8):
            a("v_pk_mul_f32 %s, %s, %s op_sel_hi:[1,0]" % (v(nu + 2 * j, 2), v(nu + 2 * j, 2), v(d, 2)))
        for j in range(8):
            a("v_cvt_pk_bf16_f32 v%d, v%d, v%d" % (OP + 8 * rt + j, nu + 2 * j, nu + 2 * j + 1))
        a("buffer_store_dwordx4 %s, v8, s[28:31], s10 offen" % v(OP + 8 * rt, 4))
        a("buffer_store_dwordx4 %s, v8, s[28:31], s10 offen offset:1024" % v(OP + 8 * rt + 4, 4))
        if rt == 0: a("s_add_u32 s10, s10, 65536")
    if cfg.stamps:
        stamp(a, cfg, 12)
        a("s_waitcnt vmcnt(0)")
        stamp(a, cfg, 13)
        a("s_cmp_lg_u32 s3, 0"); a("s_cbranch_scc1 L1_end")
        write_stamps(a, cfg, NST, "s2", "v0", 0)
    a.label("L1_end")
    a("s_endpgm")
    return a, name, (name, 256, 512, 3 * SLOT), kd(name, 256, 102, 256)

def gen_k2(cfg):
    a = Asm()
    name = "hh_k2_kernel"
    kernel_begin(a, name)
    a("s_cmp_ge_u32 s2, 256")
    a("s_cbranch_scc1 L2_end")
    a("s_load_dwordx4 s[4:7], s[0:1], 24")
    a("s_load_dwordx2 s[14:15], s[0:1], 48")
    stamp(a, cfg, 0)
    a("v_lshrrev_b32 v1, 6, v0")
    a("v_and_b32 v0, 63, v0")
    a("v_readfirstlane_b32 s3, v1")
    a("s_and_b32 s10, s2, 7"); a("s_lshr_b32 s11, s2, 3")
    a("s_and_b32 s48, s10, 3"); a("s_lshl_b32 s48, s48, 2"); a("s_and_b32 s12, s11, 3"); a("s_add_u32 s48, s48, s12")
    a("s_lshr_b32 s49, s10, 2"); a("s_lshl_b32 s49, s49, 3"); a("s_lshr_b32 s12, s11, 2"); a("s_add_u32 s49, s49, s12")
    a("s_and_b32 s51, s3, 3")
    a("s_lshr_b32 s52, s3, 2")
    a("s_waitcnt lgkmcnt(0)")
    a("s_lshl_b32 s10, s49, 7")
    a("s_add_u32 s20, s4, s10"); a("s_addc_u32 s21, s5, 0"); a("s_sub_u32 s22, %d, s10" % (1024 * 2048)); a("s_mov_b32 s23, 0x20000")
    a("s_mov_b32 s24, s6"); a("s_mov_b32 s25, s7"); a("s_mov_b32 s26, %d" % (2048 * 2048)); a("s_mov_b32 s27, 0x20000")
    a("s_mov_b32 s28, s14"); a("s_mov_b32 s29, s15"); a("s_mov_b32 s30, 0x10000000"); a("s_mov_b32 s31, 0x20000")
    a("v_lshrrev_b32 v3, 3, v0"); a("v_and_b32 v4, 7, v0")
    a("v_lshrrev_b32 v6, 4, v0"); a("v_and_b32 v6, 1, v6"); a("v_lshlrev_b32 v6, 2, v6"); a("v_xor_b32 v6, v6, v4")
    a("v_lshlrev_b32 v6, 4, v6")
    a("v_lshl_add_u32 v6, v3, 11, v6")
    for i in range(4):
        a("v_add_u32 v%d, %d, v6" % (10 + i, i * 8 * 2048 - i * 1024)) if i else a("v_mov_b32 v10, v6")
    a("s_lshl_b32 s53, s52, 9"); a("s_lshl_b32 s10, s51, 5"); a("s_add_u32 s53, s53, s10")
    a("s_lshl_b32 s54, s48, 2"); a("s_add_u32 s54, s54, s51"); a("s_lshl_b32 s54, s54, 5")
    a("s_lshl_b32 s10, s52, 4"); a("s_add_u32 s54, s54, s10"); a("s_lshl_b32 s54, s54, 11"); a("s_add_u32 s54, s54, %d" % WS_O)
    a("v_lshlrev_b32 v8, 4, v0")
    AF = 64
    for c in range(4):
        a("s_add_u32 s10, s53, %d" % (128 * c))
        a("s_lshl_b32 m0, s10, 7")
        a("s_lshl_b32 s11, s10, 11")
        for i in range(4):
            a("buffer_load_dwordx4 v%d, s[20:23], s11 offen offset:%d lds" % (10 + i, 1024 * i))
        for half in range(2):
            a("s_add_u32 s10, s54, %d" % (8192 * c + 4096 * half))
            for i in range(4):
                a("buffer_load_dwordx4 %s, v8, s[28:31], s10 offen offset:%d" % (v(AF + 32 * c + 16 * half + 4 * i, 4), 1024 * i))
    a("v_lshrrev_b32 v2, 5, v0")
    a("v_bfe_u32 v4, v0, 2, 2"); a("v_lshl_add_u32 v5, v2, 2, v4"); a("v_lshlrev_b32 v5, 7, v5")
    a("v_bfe_u32 v6, v0, 4, 1"); a("v_lshlrev_b32 v6, 5, v6")
    a("v_and_b32 v7, 3, v0"); a("v_lshl_add_u32 v6, v7, 3, v6")
    a("v_bfe_u32 v7, v0, 3, 1"); a("v_lshlrev_b32 v7, 6, v7")
    a("v_xor_b32 v6, v6, v7")
    a("s_lshl_b32 s10, s52, 16")
    a("v_add3_u32 v14, v5, v6, s10")
    a("v_xor_b32 v15, 64, v14")
    ACC = 32
    BF = 16
    def breads(ks, S):
        r = []
        for ct in range(2):
            for t in range(2):
                r.append("ds_read_b64_tr_b16 %s, v%d offset:%d" % (v(BF + 8 * S + 4 * ct + 2 * t, 2), 14 + ct, ks * 2048 + t * 1024))
        return r
    for c in range(4):
        a("s_waitcnt vmcnt(%d)" % (12 * (3 - c)))
        a("s_barrier")
        if c == 0: stamp(a, cfg, 1)
        for r in breads(8 * c, 0): a(r)
        for k in range(8):
            ks = 8 * c + k
            S = k & 1
            if k < 7:
                for r in breads(ks + 1, S ^ 1): a(r)
                a("s_waitcnt lgkmcnt(4)")
            else:
                a("s_waitcnt lgkmcnt(0)")
            for ct in range(2):
                C = v(ACC + 16 * ct, 16)
                a("v_mfma_f32_32x32x16_bf16 %s, %s, %s, %s" % (C, v(BF + 8 * S + 4 * ct, 4), v(AF + 4 * ks, 4), "0" if ks == 0 else C))
    stamp(a, cfg, 2)
    a("s_barrier")
    a("v_and_b32 v1, 31, v0")
    a("s_mul_i32 s10, s52, %d" % (128 * 272)); a("s_mul_i32 s11, s51, %d" % (32 * 272)); a("s_add_u32 s10, s10, s11")
    a("v_mul_u32_u24 v3, 272, v1"); a("v_lshl_add_u32 v3, v2, 4, v3"); a("v_add_u32 v3, s10, v3")
    for ct in range(2):
        for g in range(4):
            a("ds_write_b128 v3, %s offset:%d" % (v(ACC + 16 * ct + 4 * g, 4), 128 * ct + 32 * g))
    a("v_lshrrev_b32 v4, 3, v0"); a("v_and_b32 v5, 7, v0")
    a("s_lshl_b32 s10, s3, 4"); a("v_add_u32 v4, s10, v4")
    a("v_mul_u32_u24 v6, 272, v4"); a("v_lshl_add_u32 v6, v5, 5, v6")
    a("v_lshlrev_b32 v7, 11, v4"); a("v_lshl_add_u32 v7, v5, 4, v7")
    a("s_lshl_b32 s10, s48, 18"); a("s_lshl_b32 s11, s49, 7"); a("s_add_u32 s10, s10, s11")
    a("s_add_u32 s11, s10, %d" % (8 * 2048))
    a("s_waitcnt lgkmcnt(0)")
    a("s_barrier")
    R = 64
    for i in range(2):
        for kh in range(2):
            for j in range(2):
                a("ds_read_b128 %s, v6 offset:%d" % (v(R + 16 * i + 8 * kh + 4 * j, 4), i * 8 * 272 + kh * 128 * 272 + 16 * j))
    for i in range(2):
        a("s_waitcnt lgkmcnt(%d)" % (4 * (1 - i)))
        b = R + 16 * i
        for j in range(4):
            a("v_pk_add_f32 %s, %s, %s" % (v(b + 2 * j, 2), v(b + 2 * j, 2), v(b + 8 + 2 * j, 2)))
        for j in range(4):
            a("v_cvt_pk_bf16_f32 v%d, v%d, v%d" % (b + 8 + j, b + 2 * j, b + 2 * j + 1))
        a("buffer_store_dwordx4 %s, v7, s[24:27], s%d offen" % (v(b + 8, 4), 10 + i))
    if cfg.stamps:
        a("s_waitcnt vmcnt(0)")
        stamp(a, cfg, 3)
        for i in range(4, NST): stamp(a, cfg, i)
        a("s_cmp_lg_u32 s3, 0"); a("s_cbranch_scc1 L2_end")
        write_stamps(a, cfg, NST, "s2", "v0", 1)
    a.label("L2_end")
    a("s_endpgm")
    return a, name, (name, 256, 512, 131072), kd(name, 192, 96, 192)

def build(cfg, path):
    body = ""; launches = []; kds = []
    for g in (gen_k1, gen_k2):
        a, name, l, k = g(cfg)
        lines = hazard.fix(a.lines, verbose=True)
        pr = hazard.check_backedges(lines)
        for p in pr: print("BACKEDGE HAZARD:", p)
        body += "\n".join(lines) + "\n"
        launches.append(l); kds.append(k)
    open(path, "w").write(file_text(launches, body, kds))

def variants():
    for nm, kw in (("nomfma", dict(no_mfma=True)), ("noreads", dict(no_reads=True)), ("nodma", dict(no_dma=True)),
                   ("norot", dict(rot=False)), ("stage", dict(stagest=True)), ("stage_nodma", dict(stagest=True, no_dma=True)), ("nodma_noreads", dict(no_dma=True, no_reads=True)), ("nodma_nomfma", dict(no_dma=True, no_mfma=True))):
        c = Cfg(); c.stamps = True
        for k, vv in kw.items(): setattr(c, k, vv)
        build(c, "v1_%s.s" % nm)

if __name__ == "__main__":
    variants()
    c = Cfg(); build(c, "v1.s")
    c = Cfg(); c.stamps = True; build(c, "v1_st.s")
```

```python
import sys, re
from asmlib import *
import hazard

NAME = "standalone__linear_kernel_hedgehog__prompt_kernel"
LOG2E = 0x3fb8aa3b
WS_FL1 = 0x10000
WS_FL2 = 0x14000
WS_Z1  = 0x20000
WS_P2  = 0x40000
WS_P1  = 0x200000
WS_O   = 0x600000
WS_ST  = 0x8000000
TAGC = 0x9E3779B9
SPIN = 200000
NST = 20
ST0 = 62
U = 8192

class Cfg:
    stamps = False
    NB = 10
    rot = "r4"
    n15 = 2
    prioA = 1
    c3pos = 40
    lastorder = True
    pf_mall = False
    codepf = False

class E(Asm):
    def __init__(self):
        super().__init__()
        self.lg = []; self.vm = []
    def raw(self, l):
        self.lines.append("    " + l)
    def wait(self, lg=None, vm=None):
        parts = []
        if vm is not None and vm < len(self.vm):
            vm = min(vm, 63); parts.append("vmcnt(%d)" % vm)
            self.vm = self.vm[len(self.vm) - vm:] if vm else []
        if lg is not None and lg < len(self.lg):
            lg = min(lg, 15); parts.append("lgkmcnt(%d)" % lg)
            self.lg = self.lg[len(self.lg) - lg:] if lg else []
        if parts: self.raw("s_waitcnt " + " ".join(parts))
    def force(self, lg=None, vm=None):
        parts = []
        if vm is not None:
            parts.append("vmcnt(%d)" % vm); self.vm = self.vm[len(self.vm) - vm:] if vm else []
        if lg is not None:
            parts.append("lgkmcnt(%d)" % lg); self.lg = self.lg[len(self.lg) - lg:] if lg else []
        self.raw("s_waitcnt " + " ".join(parts))
    def vm_need(self, tags):
        idx = [i for i, p in enumerate(self.vm) if p[1] in tags]
        return (len(self.vm) - 1 - max(idx)) if idx else None
    def __call__(self, s, tag=None):
        for l in s.split("\n"):
            l = l.strip()
            if not l: continue
            if l.endswith(":"):
                self.lines.append(l); continue
            c = hazard.Ins(l)
            us = set(c.uses); df = set(c.defs)
            tl = us | (df if c.kind != 'ds' else set())
            tv = us | df
            nl = [i for i, p in enumerate(self.lg) if p[0] & tl]
            nv = [i for i, p in enumerate(self.vm) if p[0] & tv]
            self.wait(lg=(len(self.lg) - 1 - max(nl)) if nl else None, vm=(len(self.vm) - 1 - max(nv)) if nv else None)
            assert not l.startswith("s_waitcnt"), l
            self.raw(l)
            if c.kind == 'ds': self.lg.append((df, tag))
            if c.kind == 'vmem': self.vm.append((df, tag))
    def bar(self, vmtags=(), lg0=True):
        self.wait(lg=0 if lg0 else None, vm=self.vm_need(set(vmtags)))
        self.raw("s_barrier")

def stamp(a, cfg, idx):
    if cfg.stamps:
        a.raw("%s s[%d:%d]" % ("s_memtime" if cfg.stamps == "cyc" else "s_memrealtime", ST0 + 2 * idx, ST0 + 1 + 2 * idx))

def mf16(d, A, B, c=None):
    return "v_mfma_f32_16x16x32_bf16 %s, %s, %s, %s" % (v(d, 4), v(A, 4), v(B, 4), v(d, 4) if c is None else c)
def mf32(d, A, B, c=None):
    return "v_mfma_f32_32x32x16_bf16 %s, %s, %s, %s" % (v(d, 16), v(A, 4), v(B, 4), v(d, 16) if c is None else c)
def trd(d, addr, off):
    assert 0 <= off < 65536, off
    return "ds_read_b64_tr_b16 %s, v%d offset:%d" % (v(d, 2), addr, off)
def rd128(d, addr, off):
    assert 0 <= off < 65536, off
    return "ds_read_b128 %s, v%d offset:%d" % (v(d, 4), addr, off)
def cvt(d, x, y): return "v_cvt_pk_bf16_f32 v%d, v%d, v%d" % (d, x, y)

def pack_pair(T, X0, Y0, X1, Y1):
    L = []
    for j, (X, Y) in enumerate(((X0, Y0), (X1, Y1))):
        L += [cvt(T + 4 * j, X, X + 1), cvt(T + 4 * j + 1, X + 2, X + 3), cvt(T + 4 * j + 2, Y, Y + 1), cvt(T + 4 * j + 3, Y + 2, Y + 3)]
    for j in range(2):
        L += ["v_permlane16_swap_b32 v%d, v%d" % (T + 4 * j, T + 4 * j + 2), "v_permlane16_swap_b32 v%d, v%d" % (T + 4 * j + 1, T + 4 * j + 3)]
    return L

def softmax(T, WPHI, P, EN, S, M, OUT):
    L = [mf32(P, WPHI, T, "0"), mf32(P, WPHI + 4, T + 4)]
    mx, nm = M if isinstance(M, tuple) else (M, M + 2)
    L += ["v_max3_f32 v%d, v%d, v%d, v%d" % (mx, P, P + 1, P + 2), "v_max3_f32 v%d, -v%d, -v%d, -v%d" % (nm, P, P + 1, P + 2)]
    for i in range(3, 15, 2):
        L += ["v_max3_f32 v%d, v%d, v%d, v%d" % (mx, mx, P + i, P + i + 1), "v_max3_f32 v%d, v%d, -v%d, -v%d" % (nm, nm, P + i, P + i + 1)]
    L += ["v_max_f32 v%d, v%d, v%d" % (mx, mx, P + 15), "v_max_f32_e64 v%d, v%d, -v%d" % (nm, nm, P + 15)]
    L += ["v_permlane32_swap_b32 v%d, v%d" % (mx, nm), "v_max_f32 v%d, v%d, v%d" % (mx, mx, nm),
          "v_mul_f32 v%d, s42, v%d" % (nm, mx), "v_mul_f32 v%d, s42, v%d" % (mx, mx), "v_permlane32_swap_b32 v%d, v%d" % (mx, nm)]
    for j in range(8):
        L.append("v_pk_fma_f32 %s, %s, s[42:43], %s op_sel_hi:[1,1,0]" % (v(EN + 2 * j, 2), v(P + 2 * j, 2), v(nm, 2)))
        L.append("v_pk_fma_f32 %s, %s, s[40:41], %s op_sel_hi:[1,1,0]" % (v(P + 2 * j, 2), v(P + 2 * j, 2), v(mx, 2)))
    for j in range(4):
        for E_ in (EN, P):
            for i in range(4): L.append("v_exp_f32 v%d, v%d" % (E_ + 4 * j + i, E_ + 4 * j + i))
        if j > 0:
            for k, E_ in enumerate((EN, P)):
                L.append("v_pk_add_f32 %s, %s, %s" % (v(S + 8 * k + 2 * (j - 1), 2), v(E_ + 4 * (j - 1), 2), v(E_ + 4 * (j - 1) + 2, 2)))
    for k in range(2): L.append("v_pk_add_f32 %s, %s, %s" % (v(S + 8 * k, 2), v(S + 8 * k, 2), v(S + 8 * k + 2, 2)))
    for k, E_ in enumerate((EN, P)): L.append("v_pk_add_f32 %s, %s, %s" % (v(S + 8 * k + 6, 2), v(E_ + 12, 2), v(E_ + 14, 2)))
    for k in range(2): L.append("v_pk_add_f32 %s, %s, %s" % (v(S + 8 * k + 4, 2), v(S + 8 * k + 4, 2), v(S + 8 * k + 6, 2)))
    for k in range(2): L.append("v_pk_add_f32 %s, %s, %s" % (v(S + 8 * k, 2), v(S + 8 * k, 2), v(S + 8 * k + 4, 2)))
    L += ["v_add_f32 v%d, v%d, v%d" % (mx, S + 8, S + 9), "v_add_f32 v%d, v%d, v%d" % (nm, S, S + 1),
          "v_permlane32_swap_b32 v%d, v%d" % (mx, nm), "v_add_f32 v%d, v%d, v%d" % (mx, mx, nm),
          "v_rcp_f32 v%d, v%d" % (nm, mx), "v_rcp_f32 v%d, v%d" % (mx, mx), "v_permlane32_swap_b32 v%d, v%d" % (mx, nm)]
    for j in range(8):
        L.append("v_pk_mul_f32 %s, %s, %s op_sel_hi:[1,0]" % (v(P + 2 * j, 2), v(P + 2 * j, 2), v(mx, 2)))
        L.append("v_pk_mul_f32 %s, %s, %s op_sel_hi:[1,0]" % (v(EN + 2 * j, 2), v(EN + 2 * j, 2), v(nm, 2)))
        if j > 0:
            L.append(cvt(OUT + j - 1, P + 2 * j - 2, P + 2 * j - 1)); L.append(cvt(OUT + 8 + j - 1, EN + 2 * j - 2, EN + 2 * j - 1))
    L.append(cvt(OUT + 7, P + 14, P + 15)); L.append(cvt(OUT + 15, EN + 14, EN + 15))
    return L

def ph_addr(a, dst, t0, t1, sbase):
    a("v_and_b32 v%d, 31, v0" % t0); a("v_lshlrev_b32 v%d, 6, v%d" % (t0, t0))
    a("v_lshrrev_b32 v%d, 5, v0" % t1); a("v_lshl_add_u32 v%d, v%d, 3, v%d" % (t0, t1, t0))
    a("v_bfe_u32 v%d, v0, 2, 2" % t1); a("v_lshl_add_u32 v%d, v%d, 4, v%d" % (t0, t1, t0))
    a("v_add_u32 v%d, %s, v%d" % (dst, sbase, t0))
    for g in range(1, 4): a("v_xor_b32 v%d, %d, v%d" % (dst + g, 16 * g, dst))

def ph_writes(OUT, AD):
    return ["ds_write_b64 v%d, %s offset:%d" % (AD + g, v(OUT + 8 * s_ + 2 * g, 2), U * s_) for g in range(4) for s_ in range(2)]

def wlane(a, dst, t0, t1):
    a("v_lshrrev_b32 v%d, 4, v0" % t0); a("v_bfe_u32 v%d, v0, 2, 2" % t1)
    a("v_lshl_add_u32 v%d, v%d, 3, v%d" % (t0, t0, t1)); a("v_lshlrev_b32 v%d, 7, v%d" % (t0, t0))
    a("v_and_b32 v%d, 3, v0" % t1); a("v_lshl_add_u32 v%d, v%d, 3, v%d" % (t0, t1, t0))
    a("v_bfe_u32 v%d, v0, 3, 2" % t1); a("v_lshl_add_u32 v%d, v%d, 5, v%d" % (dst, t1, t0))

def xlane(a, dst, t0, t1):
    a("v_lshrrev_b32 v%d, 4, v0" % t0); a("v_bfe_u32 v%d, v0, 1, 3" % t1)
    a("v_xor_b32 v%d, v%d, v%d" % (t0, t0, t1)); a("v_lshlrev_b32 v%d, 4, v%d" % (t0, t0))
    a("v_and_b32 v%d, 15, v0" % t1); a("v_lshl_add_u32 v%d, v%d, 7, v%d" % (dst, t1, t0))
    a("v_xor_b32 v%d, 64, v%d" % (dst + 1, dst))

def wphi_lane(a, dst, t0, t1):
    a("v_lshrrev_b32 v%d, 5, v0" % t0); a("v_bfe_u32 v%d, v0, 2, 2" % t1)
    a("v_lshl_add_u32 v%d, v%d, 3, v%d" % (t0, t0, t1)); a("v_lshlrev_b32 v%d, 6, v%d" % (t0, t0))
    a("v_bfe_u32 v%d, v0, 4, 1" % t1); a("v_lshl_add_u32 v%d, v%d, 5, v%d" % (t0, t1, t0))
    a("v_and_b32 v%d, 3, v0" % t1); a("v_lshl_add_u32 v%d, v%d, 3, v%d" % (dst, t1, t0))

def wphi_reads(dst, addr, off):
    return [trd(dst + 4 * ks + 2 * t, addr, off + ks * 1024 + t * 256) for ks in range(2) for t in range(2)]

def qstream(a, units, xreg, ACC, RING, WR, base, events, first_c):
    D = 7
    frs = [(s, ks, ct) for s in range(len(units)) for ks in range(2) for ct in range(4)]
    st = {"base": base}
    def read(f):
        for ev in events.get(f, []): ev()
        if f >= len(frs): return
        s, ks, ct = frs[f]
        off = units[s] * U - st["base"]
        if off < 0 or off + U > 65536:
            nb = units[s] * U
            d = nb - st["base"]
            for i in range(4):
                a(("v_add_u32 v%d, %d, v%d" % (WR + i, d, WR + i)) if d > 0 else ("v_subrev_u32 v%d, %d, v%d" % (WR + i, -d, WR + i)))
            st["base"] = nb; off = 0
        for t in range(2): a(trd(RING + 4 * (f % 8) + 2 * t, WR + ct, off + ks * 4096 + t * 512))
    for f in range(D): read(f)
    for f, (s, ks, ct) in enumerate(frs):
        for rt in range(2):
            a(mf16(ACC + 16 * rt + 4 * ct, RING + 4 * (f % 8), xreg(s, ks, rt), "0" if (first_c and f < 4) else None))
        read(f + D)

def spin_head(a, name):
    a.raw("s_mov_b32 s45, 0"); a.lines.append(name + ":")
def spin_tail(a, name):
    a.raw("s_add_u32 s45, s45, 1"); a.raw("s_cmp_ge_u32 s45, %d" % SPIN); a.raw("s_cbranch_scc1 %s_d" % name)
    a.raw("s_cbranch_vccnz %s" % name); a.lines.append(name + "_d:")

def gen(cfg):
    a = E()
    NB = cfg.NB; NA = 16 - NB
    kernel_begin(a, NAME)
    a("s_cmp_ge_u32 s2, 256"); a("s_cbranch_scc1 L_end")
    a("s_load_dwordx8 s[4:11], s[0:1], 0")
    a("s_load_dwordx2 s[12:13], s[0:1], 32")
    a("s_load_dwordx2 s[14:15], s[0:1], 48")
    stamp(a, cfg, 0)
    a("v_lshrrev_b32 v1, 6, v0"); a("v_and_b32 v0, 63, v0")
    a("s_and_b32 s51, s2, 1"); a("v_readfirstlane_b32 s3, v1")
    a("s_bfe_u32 s52, s2, 0x20001")
    a("s_bfe_u32 s53, s2, 0x30003")
    a("s_lshr_b32 s54, s2, 6")
    a("s_lshl_b32 s48, s51, 3"); a("s_add_u32 s48, s48, s53")
    a("s_lshl_b32 s49, s52, 2"); a("s_add_u32 s49, s49, s54")
    a("s_mov_b32 s19, 0x20000"); a("s_mov_b32 s23, 0x20000"); a("s_mov_b32 s27, 0x20000")
    a("s_mov_b32 s31, 0x20000"); a("s_mov_b32 s35, 0x20000"); a("s_mov_b32 s39, 0x20000")
    a("s_cmp_ge_u32 s3, 4"); a("s_cbranch_scc1 L_A")

    def srd_rest():
        a("s_mov_b32 s28, s14"); a("s_mov_b32 s29, s15"); a("s_mov_b32 s30, 0x10000000")
        a("s_bfe_u32 s46, s2, 0x40003"); a("s_lshl_b32 s46, s46, 7")
        a("s_add_u32 s32, s10, s46"); a("s_addc_u32 s33, s11, 0"); a("s_sub_u32 s34, %d, s46" % (1024 * 2048))
        a("s_mov_b32 s36, s12"); a("s_mov_b32 s37, s13"); a("s_mov_b32 s38, %d" % (2048 * 2048))
        a("s_mov_b32 s40, 0x%x" % LOG2E); a("s_mov_b32 s41, 0x%x" % LOG2E)
        a("s_mov_b32 s42, 0x%x" % (LOG2E | 0x80000000)); a("s_mov_b32 s43, 0x%x" % (LOG2E | 0x80000000))

    VX, VW, XR, BWP = 10, 14, 20, 24
    BACC, BRING, BCAP = 32, 64, 96
    if cfg.rot == "r4":
        a("s_add_u32 s50, s53, s54"); a("s_and_b32 s50, s50, 1"); a("s_lshl_b32 s50, s50, 1")
        a("s_add_u32 s46, s51, s52"); a("s_and_b32 s46, s46, 1"); a("s_add_u32 s50, s50, s46"); a("s_lshl_b32 s50, s50, 2")
    elif cfg.rot == "r2":
        a("s_add_u32 s50, s53, s54"); a("s_and_b32 s50, s50, 1"); a("s_lshl_b32 s50, s50, 3")
    else:
        a("s_mov_b32 s50, 0")
    a("s_lshl_b32 s55, s3, 12"); a("s_lshl_b32 s56, s3, 11")
    a("v_lshrrev_b32 v3, 3, v0"); a("v_and_b32 v4, 7, v0")
    a("v_lshrrev_b32 v5, 4, v0")
    a("v_xor_b32 v6, v5, v4"); a("v_lshlrev_b32 v6, 4, v6")
    a("s_lshl_b32 s46, s3, 16")
    a("v_lshl_add_u32 v6, v3, 11, v6"); a("v_add_u32 v%d, s46, v6" % VX)
    a("v_xor_b32 v6, 64, v%d" % VX)
    a("v_add_u32 v%d, %d, v6" % (VX + 1, 8 * 2048 - 1024))
    a("v_add_u32 v%d, %d, v%d" % (VX + 2, 16 * 2048 - 2048, VX))
    a("v_add_u32 v%d, %d, v6" % (VX + 3, 24 * 2048 - 3072))
    a("v_and_b32 v5, 1, v5"); a("v_lshlrev_b32 v5, 1, v5"); a("v_xor_b32 v5, v5, v4"); a("v_lshlrev_b32 v5, 4, v5")
    a("v_mul_u32_u24 v6, 6144, v3")
    a("s_mul_i32 s46, s3, %d" % (16 * 6144))
    a("s_and_b32 s47, s49, 1"); a("s_lshl_b32 s47, s47, 7")
    a("s_add_u32 s57, s46, s47"); a("s_add_u32 s57, s57, 2048")
    a("s_xor_b32 s47, s47, 128"); a("s_add_u32 s46, s46, s47")
    a("v_add3_u32 v%d, v5, v6, s57" % VW)
    a("v_add3_u32 v%d, v5, v6, s46" % (VW + 4))
    a("v_xor_b32 v7, 64, v%d" % VW); a("v_add_u32 v%d, %d, v7" % (VW + 1, 8 * 6144 - 1024))
    a("v_add_u32 v%d, 2048, v%d" % (VW + 2, VW)); a("v_add_u32 v%d, 2048, v%d" % (VW + 3, VW + 1))
    a("s_lshl_b32 s46, s48, 18"); a("s_mov_b32 s18, %d" % (128 * 2048))
    a("s_lshr_b32 s47, s49, 1"); a("s_lshl_b32 s47, s47, 8")
    a("s_sub_u32 s22, %d, s47" % (1024 * 6144))
    a("s_lshl_b32 s58, s50, 7"); a("s_mul_i32 s59, s50, %d" % (64 * 6144))
    a("s_mov_b32 m0, s55")
    a.raw("s_waitcnt lgkmcnt(0)")
    a("s_add_u32 s16, s4, s46"); a("s_addc_u32 s17, s5, 0")
    a("s_add_u32 s20, s6, s47"); a("s_addc_u32 s21, s7, 0")

    def kst(t):
        a("s_add_u32 s57, s50, %d" % t); a("s_and_b32 s57, s57, 15")
    def dma_x(t, first=False):
        if not first:
            kst(t); a("s_add_u32 m0, s55, %d" % (2 * U * (t % 3))); a("s_lshl_b32 s58, s57, 7"); a("s_mul_i32 s59, s57, %d" % (64 * 6144))
        for j in range(4): a("buffer_load_dwordx4 v%d, s[16:19], s58 offen offset:%d lds" % (VX + j, 1024 * j), tag="S%d" % t)
    def dma_w2(vreg, unit, tag, srd="s[20:23]", soff="s59"):
        a("s_add_u32 m0, s56, %d" % (unit * U))
        for i in range(2): a("buffer_load_dwordx4 v%d, %s, %s offen offset:%d lds" % (vreg + i, srd, soff, 1024 * i), tag=tag)
    def dma_stage(t, first=False):
        dma_x(t, first)
        dma_w2(VW, 6 + 2 * (t % 3), "S%d" % t); dma_w2(VW + 2, 7 + 2 * (t % 3), "S%d" % t)
    QUNIT = {}
    for t in range(8): QUNIT[t] = 12 + t
    rest = [0, 1, 6, 7, 9, 8, 2, 3]
    assert NB == 10
    for t in range(8, 16): QUNIT[t] = rest[t - 8]
    def dma_q_parts(t):
        def p0():
            kst(t); a("s_add_u32 m0, s56, %d" % (QUNIT[t] * U)); a("s_mul_i32 s59, s57, %d" % (64 * 6144))
            a("buffer_load_dwordx4 v%d, s[20:23], s59 offen lds" % (VW + 4), tag="Q%d" % t)
        def p1():
            a("buffer_load_dwordx4 v%d, s[20:23], s59 offen offset:1024 lds" % (VW + 5), tag="Q%d" % t)
        return [p0, p1]
    VWO = 22
    def dma_wo_parts(j):
        def p0():
            a("s_add_u32 m0, s56, %d" % ((4 + j) * U)); a("s_mov_b32 s59, %d" % (j * 64 * 2048))
            a("buffer_load_dwordx4 v%d, s[32:35], s59 offen lds" % VWO, tag="WO")
        def p1():
            a("buffer_load_dwordx4 v%d, s[32:35], s59 offen offset:1024 lds" % (VWO + 1), tag="WO")
        return [p0, p1]

    dma_stage(0, True)
    a.raw("s_load_dword s44, s[14:15], 0")
    dma_stage(1)
    stamp(a, cfg, 1)
    a("v_xor_b32 v7, 64, v%d" % (VW + 4)); a("v_add_u32 v%d, %d, v7" % (VW + 5, 8 * 6144 - 1024))
    srd_rest()
    a("s_mov_b32 s24, s8"); a("s_mov_b32 s25, s9"); a("s_mov_b32 s26, 65536")
    xlane(a, XR, 1, 2)
    a("v_add_u32 v%d, s55, v%d" % (XR, XR)); a("v_add_u32 v%d, s55, v%d" % (XR + 1, XR + 1))
    a("v_lshrrev_b32 v5, 4, v0"); a("v_lshlrev_b32 v5, 1, v5"); a("v_xor_b32 v5, v5, v4"); a("v_lshlrev_b32 v5, 4, v5")
    a("v_lshl_add_u32 v5, v3, 11, v5"); a("s_lshl_b32 s46, s3, 15")
    a("v_add_u32 v%d, s46, v5" % VWO); a("v_add_u32 v%d, %d, v%d" % (VWO + 1, 8 * 2048 - 1024, VWO))
    a("v_lshlrev_b32 v9, 4, v0")
    wphi_lane(a, 8, 1, 2)
    a("s_and_b32 s46, s49, 1"); a("s_lshl_b32 s46, s46, 1"); a("s_and_b32 s47, s3, 1"); a("s_add_u32 s46, s46, s47")
    a("s_lshl_b32 s46, s46, 11"); a("s_add_u32 s46, s46, %d" % (19 * U)); a("v_add_u32 v8, s46, v8")
    a.raw("s_waitcnt lgkmcnt(0)")
    a("s_add_u32 s44, s44, 0x%x" % TAGC)
    def bx(s, ks, rt): return BCAP + 16 * s + 8 * ks + 4 * rt
    for t in range(16):
        a.bar(["S%d" % t] + (["WP"] if t == 2 else []))
        if t == 0: stamp(a, cfg, 2)
        if t == 8: stamp(a, cfg, 3)
        if t == 15: stamp(a, cfg, 4)
        if t < NB:
            for ks in range(2):
                for rt in range(2): a(rd128(bx(t, ks, rt), XR + ks, 2 * U * (t % 3) + 2048 * rt))
        if t == 3:
            for l in wphi_reads(BWP, 8, 0): a(l)
        if t == 0:
            a("s_lshr_b32 s46, s49, 1"); a("s_lshl_b32 s46, s46, 13"); a("s_add_u32 s46, s46, s56")
            a("s_add_u32 m0, s56, %d" % (19 * U))
            for i in range(2): a("buffer_load_dwordx4 v9, s[24:27], s46 offen offset:%d lds" % (1024 * i), tag="WP")
        if t + 2 < 16: dma_stage(t + 2)
        if t == 14:
            for q in range(4):
                for p in dma_q_parts(q): p()
            a("s_and_b32 s46, s3, 1"); a("s_mul_i32 s46, s46, %d" % (6 * U)); a("s_add_u32 s46, s46, %d" % (4 * U))
            a("s_xor_b32 s47, s56, 2048"); a("s_add_u32 s46, s46, s47")
            ph_addr(a, 14, 1, 2, "s46")
            wlane(a, 10, 1, 2)
            a("v_add_u32 v10, %d, v10" % (12 * U))
            for i in range(1, 4): a("v_xor_b32 v%d, %d, v10" % (10 + i, 32 * i))
            a("s_add_u32 s46, s56, %d" % (8 * U)); a("v_add_u32 v20, s46, v9")
        if t == 15:
            for q in range(4, 4 + cfg.n15):
                for p in dma_q_parts(q): p()
    a.bar()
    stamp(a, cfg, 5)
    T = 32
    a(rd128(T, 20, 0)); a(rd128(T + 4, 20, 1024))
    for l in softmax(T, BWP, 40, 56, 72, 2, 72): a(l)
    for l in ph_writes(72, 14): a(l)
    stamp(a, cfg, 6)
    a.bar(["Q%d" % q for q in range(4 + cfg.n15)])
    stamp(a, cfg, 7)
    ev = {}
    def spread(parts, lo, hi):
        n = len(parts)
        for i, p in enumerate(parts):
            ev.setdefault(lo + (i * (hi - lo)) // n, []).append(p)
    p1 = []
    for q in list(range(4 + cfg.n15, 14)): p1 += dma_q_parts(q)
    spread(p1, 7, cfg.c3pos - 2)
    def c3():
        a.bar(["Q%d" % q for q in range(10)], lg0=False); stamp(a, cfg, 8)
    ev.setdefault(cfg.c3pos, []).append(c3)
    assert cfg.c3pos - 7 >= 32 and cfg.c3pos <= 8 * (4 + cfg.n15)
    p2 = dma_q_parts(14) + dma_q_parts(15)
    for j in range(8, 12): p2 += dma_wo_parts(j)
    spread(p2, cfg.c3pos + 1, 8 * NB - 2)
    qstream(a, [QUNIT[t] for t in range(NB)], bx, BACC, BRING, 10, 12 * U, ev, True)
    a("s_lshr_b32 s46, s3, 1"); a("s_mul_i32 s46, s46, %d" % (6 * U)); a("s_and_b32 s47, s3, 1"); a("s_lshl_b32 s47, s47, 13")
    a("s_add_u32 s46, s46, s47"); a("s_add_u32 s46, s46, %d" % (4 * U)); a("v_add_u32 v1, s46, v9")
    a("s_lshl_b32 s51, s49, 2"); a("s_lshr_b32 s46, s48, 2"); a("s_add_u32 s51, s51, s46")
    a("s_lshl_b32 s52, s51, 7"); a("s_add_u32 s52, s52, %d" % WS_FL1)
    a("s_lshl_b32 s53, s51, 11"); a("s_and_b32 s46, s48, 3"); a("s_lshl_b32 s46, s46, 5"); a("s_add_u32 s53, s53, s46")
    a("s_lshl_b32 s46, s3, 2"); a("s_add_u32 s53, s53, s46"); a("s_add_u32 s53, s53, %d" % WS_Z1)
    a("s_lshl_b32 s51, s49, 4"); a("s_add_u32 s51, s51, s48")
    a("s_lshl_b32 s46, s3, 8")
    a("s_lshl_b32 s54, s51, 14"); a("s_add_u32 s54, s54, s46"); a("s_add_u32 s54, s54, %d" % WS_P1)
    a("s_lshl_b32 s57, s51, 10"); a("s_add_u32 s57, s57, s46"); a("s_add_u32 s57, s57, %d" % WS_P2)
    a("s_xor_b32 s58, s49, 1"); a("s_lshl_b32 s58, s58, 14"); a("s_add_u32 s58, s58, s55"); a("s_add_u32 s58, s58, %d" % WS_P2)
    for i in range(8):
        a("ds_write_b128 v1, %s offset:%d" % (v(BACC + 4 * i, 4), 1024 * i))
    a("v_and_b32 v2, 15, v0"); a("v_lshlrev_b32 v10, 2, v2")
    a("v_lshrrev_b32 v3, 4, v0"); a("v_lshlrev_b32 v11, 4, v2"); a("v_lshl_add_u32 v11, v3, 10, v11")
    for i in range(1, 4): a("v_add_u32 v%d, %d, v11" % (11 + i, 4096 * i))
    a("v_bfe_u32 v4, v0, 1, 4"); a("v_and_b32 v5, 1, v0"); a("v_lshlrev_b32 v5, 4, v5"); a("v_lshl_add_u32 v15, v4, 7, v5")
    a("v_add_u32 v16, s56, v9")
    a("s_lshl_b32 s46, s3, 6"); a("s_add_u32 s46, s46, %d" % U)
    a("v_lshl_add_u32 v17, v3, 1, v5"); a("v_add_u32 v17, s46, v17")
    a("v_lshlrev_b32 v18, 2, v0"); a("v_mov_b32 v19, 0")
    stamp(a, cfg, 9)
    a.bar(["Q%d" % q for q in range(16)])
    stamp(a, cfg, 10)
    a("ds_write_b32 v18, v19 offset:%d" % (U + 256))
    a.force(vm=0)
    spin_head(a, "L_f1")
    a.raw("buffer_load_dword v96, v10, s[28:31], s52 offen sc1"); a.raw("s_waitcnt vmcnt(0)")
    a.raw("v_cmp_ne_u32 vcc, s44, v96")
    spin_tail(a, "L_f1")
    stamp(a, cfg, 11)
    R = 100
    for i in range(4): a("buffer_load_dwordx4 %s, v%d, s[28:31], s54 offen sc1" % (v(R + 4 * i, 4), 11 + i))
    a("buffer_load_dword v118, v15, s[28:31], s53 offen sc1")
    a("v_mov_b32 v123, s44")
    for h in range(2): a("v_pk_add_f32 %s, %s, %s" % (v(R + 2 * h, 2), v(R + 2 * h, 2), v(R + 4 + 2 * h, 2)))
    for h in range(2): a("v_pk_add_f32 %s, %s, %s" % (v(R + 8 + 2 * h, 2), v(R + 8 + 2 * h, 2), v(R + 12 + 2 * h, 2)))
    for h in range(2): a("v_pk_add_f32 %s, %s, %s" % (v(R + 2 * h, 2), v(R + 2 * h, 2), v(R + 8 + 2 * h, 2)))
    a("v_add_f32_dpp v118, v118, v118 row_ror:2 row_mask:0xf bank_mask:0xf")
    a("v_permlane32_swap_b32 v%d, v%d" % (R, R + 2)); a("v_permlane32_swap_b32 v%d, v%d" % (R + 1, R + 3))
    a("v_add_f32_dpp v118, v118, v118 row_ror:4 row_mask:0xf bank_mask:0xf")
    a("v_pk_add_f32 %s, %s, %s" % (v(R + 4, 2), v(R, 2), v(R + 2, 2)))
    a("v_pk_add_f32 %s, %s, %s" % (v(R, 2), v(R, 2), v(R + 2, 2)))
    a("v_add_f32_dpp v119, v118, v118 row_ror:8 row_mask:0xf bank_mask:0xf")
    a("v_add_f32_dpp v118, v118, v118 row_ror:8 row_mask:0xf bank_mask:0xf")
    a("v_permlane16_swap_b32 v%d, v%d" % (R, R + 4)); a("v_permlane16_swap_b32 v%d, v%d" % (R + 1, R + 5))
    a("v_permlane16_swap_b32 v118, v119")
    a("v_pk_add_f32 %s, %s, %s" % (v(R, 2), v(R, 2), v(R + 4, 2)))
    a("v_add_f32 v118, v118, v119")
    a(cvt(120, R, R + 1)); a(cvt(121, R, R + 1)); a(cvt(122, 118, 118))
    a("v_permlane32_swap_b32 v120, v121")
    a("s_mov_b64 exec, 0xffff")
    a("buffer_store_dwordx4 v[120:123], v9, s[28:31], s57 offen sc1")
    a("s_mov_b64 exec, -1")
    stamp(a, cfg, 12)
    for j in range(12, 16):
        for p in dma_wo_parts(j): p()
    G = 128
    spin_head(a, "L_p2")
    for g in range(4): a.raw("buffer_load_dwordx4 %s, v9, s[28:31], s58 offen offset:%d sc1" % (v(G + 4 * g, 4), 1024 * g))
    a.raw("s_waitcnt vmcnt(0)"); a.vm = []
    a.raw("v_xor_b32 v2, s44, v%d" % (G + 3))
    for g in range(1, 4): a.raw("v_bitop3_b32 v2, v2, v%d, v123 bitop3:0xf6" % (G + 4 * g + 3))
    a.raw("v_cmp_ne_u32 vcc, 0, v2")
    spin_tail(a, "L_p2")
    stamp(a, cfg, 13)
    for g in range(4):
        a("ds_write_b64 v16, %s offset:%d" % (v(G + 4 * g, 2), (g >> 1) * 1024 + (g & 1) * 8))
        a("ds_write_b16 v17, v%d offset:%d" % (G + 4 * g + 2, (g >> 1) * 32 + (g & 1) * 8))
    a.bar()
    stamp(a, cfg, 14)
    for j in range(0, 8):
        for p in dma_wo_parts(j): p()
    a("s_mov_b32 s47, 1")
    stamp(a, cfg, 15)
    a("s_branch L_G2")
    a.lg = []; a.vm = []

    a.label("L_A")
    XA, WA, WPK, WPQ = 10, 14, 24, 32
    KA, VA, XT, WF, CAP = 48, 80, 112, 128, 160
    if cfg.prioA: a("s_setprio %d" % cfg.prioA)
    a("s_sub_u32 s3, s3, 4")
    a("s_lshl_b32 s55, s3, 12"); a("s_lshl_b32 s56, s3, 11")
    a("s_and_b32 s52, s3, 1"); a("s_lshr_b32 s51, s3, 1")
    xlane(a, XA, 1, 2)
    a("s_xor_b32 s46, s55, 4096")
    a("v_add_u32 v%d, s46, v%d" % (XA + 2, XA)); a("v_add_u32 v%d, s46, v%d" % (XA + 3, XA + 1))
    a("v_add_u32 v%d, s55, v%d" % (XA, XA)); a("v_add_u32 v%d, s55, v%d" % (XA + 1, XA + 1))
    wlane(a, 16, 1, 2)
    a("s_lshl_b32 s46, s52, 6"); a("v_xor_b32 v%d, s46, v16" % WA)
    a("v_add_u32 v%d, %d, v%d" % (WA, 6 * U, WA)); a("v_xor_b32 v%d, 32, v%d" % (WA + 1, WA))
    wphi_lane(a, 17, 1, 2)
    a("s_and_b32 s46, s49, 1"); a("s_lshl_b32 s46, s46, 12"); a("s_xor_b32 s47, s46, 4096"); a("s_add_u32 s47, s47, %d" % (19 * U))
    a("v_add_u32 v18, s47, v17")
    a("s_lshl_b32 s47, s52, 11"); a("s_add_u32 s46, s46, s47"); a("s_add_u32 s46, s46, %d" % (19 * U))
    a("v_add_u32 v17, s46, v17")
    a("v_lshlrev_b32 v9, 4, v0")
    a("s_add_u32 s46, s56, %d" % (8 * U)); a("v_add_u32 v19, s46, v9")
    a("v_and_b32 v1, 15, v0"); a("v_lshlrev_b32 v1, 6, v1")
    a("v_lshrrev_b32 v2, 5, v0"); a("v_bfe_u32 v3, v0, 2, 2"); a("v_xor_b32 v2, v2, v3"); a("v_lshl_add_u32 v1, v2, 4, v1")
    a("v_bfe_u32 v2, v0, 4, 1"); a("v_lshl_add_u32 v1, v2, 3, v1")
    a("s_lshl_b32 s46, s52, 13"); a("s_add_u32 s46, s46, %d" % (2 * U)); a("s_add_u32 s46, s46, s56")
    a("v_add_u32 v20, s46, v1"); a("v_xor_b32 v21, 32, v20"); a("v_xor_b32 v22, 2048, v20"); a("v_xor_b32 v23, 2048, v21")
    a("s_mul_i32 s53, s52, %d" % (6 * U)); a("s_add_u32 s53, s53, %d" % (4 * U))
    a("s_add_u32 s46, s53, s56")
    ph_addr(a, 4, 1, 2, "s46")
    a.raw("s_waitcnt lgkmcnt(0)")
    a.raw("s_load_dword s44, s[14:15], 0")
    srd_rest()
    if cfg.codepf:
        a.raw("s_getpc_b64 s[24:25]")
        a.lines.append("L_pcref:")
        a.raw("s_sub_u32 s24, s24, L_pcref-%s" % NAME); a.raw("s_subb_u32 s25, s25, 0"); a.raw("s_mov_b32 s26, L_end-%s" % NAME)
        a("s_lshl_b32 s46, s3, 13"); a("v_lshlrev_b32 v1, 7, v0")
        a("buffer_load_dword v8, v1, s[24:27], s46 offen")
    a.raw("s_waitcnt lgkmcnt(0)")
    a("s_add_u32 s44, s44, 0x%x" % TAGC)

    def xo(n, i):
        t, ks = n >> 1, n & 1
        if t >= NB: return CAP + 16 * (t - NB) + 8 * ks + 4 * i
        return CAP + 16 * (NA - 1) + 8 * ks + 4 * i
    def xf(n, i): return xo(n, i) if i < 2 else XT + 8 * (n & 1) + 4 * (i - 2)
    def wf(n, j): return WF + 16 * (n & 1) + 4 * j
    def reads(n):
        t, ks = n >> 1, n & 1; sl = t % 3
        def rx(i): return rd128(xf(n, i), XA + 2 * (i >> 1) + ks, 2 * U * sl + 2048 * (i & 1))
        def rw(j): return [trd(wf(n, j) + 2 * tt, WA + (j & 1), 2 * U * sl + U * (j >> 1) + 4096 * ks + 512 * tt) for tt in range(2)]
        return [rx(0)] + rw(0) + [rx(1), rx(2), rx(3)] + rw(1) + rw(2) + rw(3)
    def accK(i, j): return KA + 8 * i + 4 * j
    def accV(i, j): return VA + 8 * i + 4 * j
    def mm(n):
        return [mf16(accK(i, j) if j < 2 else accV(i, j - 2), wf(n, j), xf(n, i), "0" if n == 0 else None) for j in range(4) for i in range(4)]
    extra = {6: wphi_reads(WPK, 17, 0), 8: wphi_reads(WPQ, 18, 0), 10: wphi_reads(WPQ + 8, 18, 2048)}
    a.bar()
    stamp(a, cfg, 1)
    for r in reads(0): a(r)
    TO, TW = WF, WF + 16
    nlast = 30 if cfg.lastorder else 32
    for n in range(nlast):
        m = mm(n)
        r = reads(n + 1) if n < 31 else []
        if n % 2 == 0:
            r = r + extra.get(n, [])
            for i in range(16):
                a(m[i])
                if i < len(r): a(r[i])
        else:
            for i in range(16):
                if i == 4 and n < 31:
                    a.bar()
                    if n == 15: stamp(a, cfg, 2)
                    if n == 29: stamp(a, cfg, 3)
                a(m[i])
                if i >= 4 and r: a(r[i - 4])
    po = pack_pair(TO, accK(2, 0), accK(3, 0), accK(2, 1), accK(3, 1))
    po += ["ds_write_b128 v19, %s" % v(TO, 4), "ds_write_b128 v19, %s offset:1024" % v(TO + 4, 4)]
    pw = pack_pair(TW, accK(0, 0), accK(1, 0), accK(0, 1), accK(1, 1))
    if cfg.lastorder:
        m30 = mm(30); m31 = mm(31); r = reads(31)
        seq = m30[:12]
        for i in range(12): a(seq[i]); a(r[i])
        k31 = [m31[2], m31[3], m31[6], m31[7], m31[0], m31[1], m31[4], m31[5]]
        for x in k31: a(x)
        tail = m30[12:] + m31[8:]
        fill = po + pw
        k = 0
        for i, x in enumerate(tail):
            a(x)
            if i >= 2:
                for _ in range(2):
                    if k < len(po): a(fill[k]); k += 1
        while k < len(po): a(fill[k]); k += 1
        a.bar()
        stamp(a, cfg, 4)
        for l in pw: a(l)
    else:
        for l in po: a(l)
        a.bar()
        stamp(a, cfg, 4)
        for l in pw: a(l)
    sm = softmax(TW, WPK, KA, KA + 16, XT, 10, XT)
    vp = [cvt(VA + j, VA + 2 * j, VA + 2 * j + 1) for j in range(16)]
    vw = ["ds_write_b64 v%d, %s offset:%d" % (20 + j + 2 * (i >> 1), v(VA + 4 * i + 2 * j, 2), 1024 * (i & 1)) for i in range(4) for j in range(2)]
    for l in sm[:2] + vp + vw + sm[2:]: a(l)
    for l in ph_writes(XT, 4): a(l)
    a("v_lshrrev_b32 v1, 5, v0"); a("v_bfe_u32 v2, v0, 2, 2"); a("v_lshl_add_u32 v2, v1, 3, v2"); a("v_lshlrev_b32 v2, 6, v2")
    a("v_bfe_u32 v3, v0, 4, 1"); a("v_xor_b32 v3, v3, v1"); a("v_lshl_add_u32 v2, v3, 5, v2")
    a("v_and_b32 v3, 3, v0"); a("v_lshl_add_u32 v2, v3, 3, v2")
    a("v_xor_b32 v3, 16, v2"); a("v_add_u32 v3, 256, v3")
    a("s_lshl_b32 s46, s51, 13"); a("s_add_u32 s46, s46, s53")
    a("s_lshl_b32 s47, s52, 13"); a("s_add_u32 s47, s47, %d" % (2 * U))
    a("v_add_u32 v10, s46, v2"); a("v_add_u32 v11, s46, v3"); a("v_add_u32 v12, s47, v2"); a("v_add_u32 v13, s47, v3")
    SEL = 148
    a("v_lshrrev_b32 v1, 2, v0"); a("v_lshrrev_b32 v2, 4, v0"); a("v_xor_b32 v1, v1, v2"); a("v_and_b32 v1, 1, v1")
    a("v_lshrrev_b32 v2, 5, v0"); a("v_lshlrev_b32 v2, 4, v2"); a("v_lshl_add_u32 v19, v1, 8, v2"); a("v_add_u32 v19, %d, v19" % U)
    a("v_subrev_u32 v1, 1, v1"); a("v_and_b32 v%d, 0x3f803f80, v1" % SEL)
    for i in range(1, 4): a("v_mov_b32 v%d, v%d" % (SEL + i, SEL))
    a("s_lshl_b32 s46, s52, 1"); a("s_add_u32 s46, s46, s51"); a("s_lshl_b32 s47, s49, 2"); a("s_add_u32 s46, s46, s47")
    a("s_lshl_b32 s57, s46, 16"); a("s_lshl_b32 s47, s48, 10"); a("s_add_u32 s57, s57, s47"); a("s_add_u32 s57, s57, %d" % WS_P1)
    a("s_lshl_b32 s58, s46, 11"); a("s_lshl_b32 s47, s48, 7"); a("s_add_u32 s58, s58, s47"); a("s_add_u32 s58, s58, %d" % WS_Z1)
    a("s_lshl_b32 s59, s46, 7"); a("s_lshl_b32 s47, s48, 2"); a("s_add_u32 s59, s59, s47"); a("s_add_u32 s59, s59, %d" % WS_FL1)
    a("v_lshlrev_b32 v8, 2, v0")
    stamp(a, cfg, 5)
    a.bar()
    stamp(a, cfg, 6)
    FP, FV, KV, ZZ = 48, 80, 128, 144
    def kvr(ks):
        return [trd(FP + 4 * ks, 10, 1024 * ks), trd(FP + 4 * ks + 2, 11, 1024 * ks), trd(FV + 4 * ks, 12, 1024 * ks), trd(FV + 4 * ks + 2, 13, 1024 * ks)]
    for ks in range(4):
        for l in kvr(ks): a(l)
    for ks in range(8):
        a(mf32(KV, FP + 4 * ks, FV + 4 * ks, "0" if ks == 0 else None))
        if ks + 4 < 8:
            for l in kvr(ks + 4): a(l)
    for ks in range(8): a(mf16(ZZ, SEL, FP + 4 * ks, "0" if ks == 0 else None))
    a("v_mov_b32 v1, s44"); a("v_mov_b32 v2, 0")
    for g in range(4):
        a("buffer_store_dwordx4 %s, v9, s[28:31], s57 offen sc1" % v(KV + 4 * g, 4))
        if g < 3: a("s_add_u32 s57, s57, 16384")
    a("s_mov_b32 exec_hi, 0")
    a("buffer_store_dword v%d, v8, s[28:31], s58 offen sc1" % ZZ)
    a("s_mov_b32 exec_hi, -1")
    stamp(a, cfg, 7)
    a("v_add_u32 v14, %d, v16" % (2 * U))
    for i in range(1, 4): a("v_xor_b32 v%d, %d, v14" % (14 + i, 32 * i))
    a("s_mul_i32 s46, s51, %d" % (6 * U)); a("s_lshl_b32 s47, s52, 13"); a("s_add_u32 s46, s46, s47"); a("s_add_u32 s46, s46, %d" % (4 * U))
    a("v_add_u32 v10, s46, v9")
    a("s_lshl_b32 s46, s48, 2"); a("s_add_u32 s46, s46, s3"); a("s_xor_b32 s47, s49, 1")
    a("s_lshl_b32 s57, s46, 16"); a("s_lshl_b32 s54, s47, 12"); a("s_add_u32 s57, s57, s54"); a("s_add_u32 s57, s57, %d" % WS_O)
    a("s_lshl_b32 s58, s46, 7"); a("s_lshl_b32 s54, s47, 2"); a("s_add_u32 s58, s58, s54"); a("s_add_u32 s58, s58, %d" % WS_FL2)
    a("v_and_b32 v3, 15, v0"); a("v_lshlrev_b32 v11, 4, v3"); a("v_bfe_u32 v3, v0, 4, 1"); a("v_lshl_add_u32 v11, v3, 10, v11")
    a("v_lshrrev_b32 v3, 5, v0"); a("v_lshl_add_u32 v11, v3, 8, v11")
    a.bar()
    a.force(vm=0)
    stamp(a, cfg, 8)
    a("s_mov_b64 exec, 1")
    a("buffer_store_dword v1, v2, s[28:31], s59 offen sc1")
    a("s_mov_b64 exec, -1")
    a.bar()
    stamp(a, cfg, 9)
    QA, QR = 48, 80
    for i in range(8): a(rd128(QA + 4 * i, 10, 1024 * i))
    qstream(a, [QUNIT[t] for t in range(NB, 16)], lambda s, ks, rt: CAP + 16 * s + 8 * ks + 4 * rt, QA, QR, 14, 2 * U, {}, False)
    stamp(a, cfg, 10)
    PQ = 96
    l0 = pack_pair(80, QA, QA + 16, QA + 4, QA + 20) + softmax(80, WPQ, 160, 176, 224, 2, PQ)
    l1 = pack_pair(88, QA + 8, QA + 24, QA + 12, QA + 28) + softmax(88, WPQ + 8, 192, 208, 240, 6 + 6, PQ + 16)
    for x, y in zip(l0, l1): a(x); a(y)
    a("s_mov_b32 s46, 0x358637bd")
    stamp(a, cfg, 11)
    a.bar()
    stamp(a, cfg, 12)
    KF, ZF, NUM, DEN, OP = 160, 192, 48, 80, 128
    for e in range(2):
        for i in range(4): a(rd128(ZF + 16 * e + 4 * i, 19, 128 * e + 32 * i))
        for i in range(4): a(rd128(KF + 16 * e + 4 * i, 9, 4096 * e + 1024 * i))
    for e in range(2):
        for i in range(4): a(mf16(DEN + 4 * e, ZF + 16 * e + 4 * i, PQ + 16 * e + 4 * i, "0" if i == 0 else None))
        for i in range(4): a(mf32(NUM + 16 * e, KF + 16 * e + 4 * i, PQ + 16 * e + 4 * i, "0" if i == 0 else None))
    for e in range(2):
        d = DEN + 4 * e; nu = NUM + 16 * e
        a("v_add_f32 v%d, s46, v%d" % (d, d)); a("v_rcp_f32 v%d, v%d" % (d, d))
    for e in range(2):
        d = DEN + 4 * e; nu = NUM + 16 * e
        for m_ in range(2):
            for j in range(4 * m_, 4 * m_ + 4): a("v_pk_mul_f32 %s, %s, %s op_sel_hi:[1,0]" % (v(nu + 2 * j, 2), v(nu + 2 * j, 2), v(d, 2)))
            for j in range(4 * m_, 4 * m_ + 4): a(cvt(OP + 8 * e + j, nu + 2 * j, nu + 2 * j + 1))
            a("buffer_store_dwordx4 %s, v11, s[28:31], s57 offen offset:%d sc1" % (v(OP + 8 * e + 4 * m_, 4), 2048 * e + 512 * m_))
    stamp(a, cfg, 13)
    a("v_mov_b32 v1, s44"); a("v_mov_b32 v2, 0")
    a.force(vm=0)
    stamp(a, cfg, 14)
    a("s_mov_b64 exec, 1")
    a("buffer_store_dword v1, v2, s[28:31], s58 offen sc1")
    a("s_mov_b64 exec, -1")
    a("s_mov_b32 s47, 0")
    if cfg.prioA: a("s_setprio 0")
    stamp(a, cfg, 15)

    a.label("L_G2")
    a.lg = []; a.vm = []
    a("s_and_b32 s48, s2, 7"); a("s_lshl_b32 s48, s48, 1"); a("s_lshr_b32 s46, s2, 7"); a("s_add_u32 s48, s48, s46")
    a("s_lshl_b32 s46, s48, 2"); a("s_add_u32 s46, s46, s3")
    a("s_lshl_b32 s52, s46, 7"); a("s_lshl_b32 s51, s47, 5"); a("s_add_u32 s52, s52, s51"); a("s_add_u32 s52, s52, %d" % WS_FL2)
    a("s_lshl_b32 s53, s46, 16"); a("s_lshl_b32 s51, s47, 15"); a("s_add_u32 s53, s53, s51"); a("s_add_u32 s53, s53, %d" % WS_O)
    a("v_and_b32 v10, 7, v0"); a("v_lshlrev_b32 v10, 2, v10")
    a("s_lshl_b32 s51, s47, 10"); a("v_add_u32 v11, s51, v9"); a("v_xor_b32 v12, 1024, v11")
    spin_head(a, "L_f2")
    a.raw("buffer_load_dword v1, v10, s[28:31], s52 offen sc1"); a.raw("s_waitcnt vmcnt(0)")
    a.raw("v_cmp_ne_u32 vcc, s44, v1")
    spin_tail(a, "L_f2")
    stamp(a, cfg, 16)
    OF, ACC, RING = 128, 48, 80
    for n in range(16):
        for i in range(2): a("buffer_load_dwordx4 %s, v%d, s[28:31], s53 offen offset:%d sc1" % (v(OF + 8 * n + 4 * i, 4), 11 + i, 2048 * (n & 1)))
        if n & 1 and n < 15: a("s_add_u32 s53, s53, 4096")
    a("v_lshrrev_b32 v1, 5, v0"); a("v_bfe_u32 v2, v0, 2, 3"); a("v_lshl_add_u32 v1, v1, 4, v2"); a("v_lshlrev_b32 v1, 7, v1")
    a("v_bfe_u32 v2, v0, 3, 2"); a("v_lshl_add_u32 v1, v2, 5, v1"); a("v_and_b32 v2, 3, v0"); a("v_lshl_add_u32 v1, v2, 3, v1")
    a("s_lshl_b32 s51, s47, 16"); a("s_add_u32 s51, s51, %d" % (4 * U)); a("v_add_u32 v14, s51, v1")
    for i in range(1, 4): a("v_xor_b32 v%d, %d, v14" % (14 + i, 32 * i))
    a("s_lshl_b32 s51, s3, 1"); a("s_add_u32 s51, s51, s47"); a("s_lshl_b32 s54, s51, 12")
    a("v_add_u32 v18, s54, v9"); a("v_xor_b32 v19, 4096, v18")
    a("s_lshl_b32 s54, s48, 18"); a("s_lshl_b32 s51, s51, 15"); a("s_add_u32 s54, s54, s51")
    a("s_bfe_u32 s51, s2, 0x40003"); a("s_lshl_b32 s51, s51, 7"); a("s_add_u32 s54, s54, s51")
    a("v_and_b32 v1, 15, v0"); a("v_lshlrev_b32 v20, 11, v1"); a("v_bfe_u32 v1, v0, 4, 1"); a("v_lshl_add_u32 v20, v1, 5, v20")
    a("v_lshrrev_b32 v1, 5, v0"); a("v_lshl_add_u32 v20, v1, 4, v20")
    a.raw("s_barrier")
    stamp(a, cfg, 17)
    D = 7
    def rdf(f):
        if f < 64:
            n, ct = f >> 2, f & 3
            for t in range(2): a(trd(RING + 4 * (f % 8) + 2 * t, 14 + ct, n * 4096 + t * 1024))
    for f in range(D): rdf(f)
    for f in range(64):
        n, ct = f >> 2, f & 3
        for i in (1, 0): a(mf16(ACC + 16 * i + 4 * ct, RING + 4 * (f % 8), OF + 8 * n + 4 * i, "0" if n == 0 else None))
        rdf(f + D)
    stamp(a, cfg, 18)
    for ct in range(4): a("ds_write_b128 v18, %s offset:%d" % (v(ACC + 16 + 4 * ct, 4), 1024 * ct))
    a.bar()
    for ct in range(4): a(rd128(RING + 4 * ct, 19, 1024 * ct))
    for j in range(2):
        for ct in (2 * j, 2 * j + 1):
            for h in range(2): a("v_pk_add_f32 %s, %s, %s" % (v(ACC + 4 * ct + 2 * h, 2), v(ACC + 4 * ct + 2 * h, 2), v(RING + 4 * ct + 2 * h, 2)))
        o = 112 + 4 * j
        for k in range(4): a(cvt(o + k, ACC + 8 * j + 2 * k, ACC + 8 * j + 2 * k + 1))
        a("v_permlane16_swap_b32 v%d, v%d" % (o, o + 2)); a("v_permlane16_swap_b32 v%d, v%d" % (o + 1, o + 3))
        a("buffer_store_dwordx4 %s, v20, s[36:39], s54 offen offset:%d" % (v(o, 4), 64 * j))
    a("s_or_b32 s46, s2, s3"); a("s_xor_b32 s51, s47, 1"); a("s_or_b32 s46, s46, s51")
    a("s_cmp_lg_u32 s46, 0"); a("s_cbranch_scc1 L_noep")
    a("v_mov_b32 v1, s44"); a("v_mov_b32 v2, 0"); a("s_mov_b64 exec, 1")
    a("buffer_store_dword v1, v2, s[28:31], 0 offen sc1")
    a("s_mov_b64 exec, -1")
    a.label("L_noep")
    if cfg.stamps:
        a.raw("s_waitcnt vmcnt(0)")
        stamp(a, cfg, 19)
        a.raw("s_waitcnt lgkmcnt(0)")
        a("s_cmp_lg_u32 s3, 0"); a("s_cbranch_scc1 L_end")
        a("s_mul_i32 s60, s2, %d" % (NST * 8)); a("s_lshl_b32 s61, s47, 16"); a("s_add_u32 s60, s60, s61"); a("s_add_u32 s60, s60, %d" % WS_ST)
        a("v_mov_b32 v2, s60"); a("s_mov_b64 exec, 1")
        for i in range(NST):
            a("v_mov_b32 v4, s%d" % (ST0 + 2 * i)); a("v_mov_b32 v5, s%d" % (ST0 + 1 + 2 * i))
            a.raw("buffer_store_dwordx2 v[4:5], v2, s[28:31], 0 offen offset:%d" % (8 * i)); a.raw("s_waitcnt vmcnt(0)")
    a.label("L_end")
    a.raw("s_endpgm")
    return a

def build(cfg, path):
    a = gen(cfg)
    lines = hazard.fix(a.lines, verbose=True)
    for p in hazard.check_backedges(lines): print("BACKEDGE HAZARD:", p)
    out = HEADER + "; @launch grid=(256,1,1) block=(512,1,1) lds=163840\n"
    out += '.amdgcn_target "amdgcn-amd-amdhsa--gfx950"\n.text\n' + "\n".join(lines) + "\n"
    out += '.section .rodata,"a"\n.p2align 6\n' + kd(NAME, 256, 102 if cfg.stamps else 64, 256)
    open(path, "w").write(out)

def mk(path, **kw):
    c = Cfg()
    for k, x in kw.items():
        assert hasattr(c, k), k
        setattr(c, k, x)
    build(c, path)

if __name__ == "__main__":
    mk("v3.s"); mk("v3_st.s", stamps=True)
```

```python
import sys, re
from asmlib import *
import hazard
from gen3 import (E, mf16, mf32, trd, rd128, cvt, pack_pair, softmax, ph_addr, ph_writes, wlane, xlane, wphi_lane,
                  wphi_reads, qstream, spin_head, spin_tail, stamp, NAME, LOG2E, TAGC, NST, ST0, U, WS_ST)

WS_FL1 = 0x10000
WS_FL2 = 0x14000
WS_Z1  = 0x20000
WS_P2  = 0x40000
WS_P1  = 0x200000
WS_O   = 0x400000

class Cfg:
    stamps = False
    NB = 10
    rot = "r4"
    prioA = 1
    c3a = 12
    c3b = 48
    pf_stage = -1
    pf_wo_l2 = True
    g2_pre = 3
    codepf = False
    stag = 40
    wo_c4 = 9
    pfx = 0
    pfx0 = 2
    rounds = None
    pfq_t = -1
    pfo_t = -1
    g2map = "4x8"
    flagpos = 30

def slot(t): return (t + 2) % 3

def gen(cfg):
    a = E()
    NB = cfg.NB; NA = 16 - NB
    assert NB == 10
    kernel_begin(a, NAME)
    a("s_cmp_ge_u32 s2, 256"); a("s_cbranch_scc1 L_end")
    a("s_load_dwordx8 s[4:11], s[0:1], 0")
    a("s_load_dwordx2 s[12:13], s[0:1], 32")
    a("s_load_dwordx2 s[14:15], s[0:1], 48")
    stamp(a, cfg, 0)
    a("v_lshrrev_b32 v1, 6, v0"); a("v_and_b32 v0, 63, v0")
    a("s_and_b32 s51, s2, 1"); a("v_readfirstlane_b32 s3, v1")
    a("s_bfe_u32 s52, s2, 0x20001")
    a("s_bfe_u32 s53, s2, 0x30003")
    a("s_lshr_b32 s54, s2, 6")
    a("s_lshl_b32 s48, s51, 3"); a("s_add_u32 s48, s48, s53")
    a("s_lshl_b32 s49, s52, 2"); a("s_add_u32 s49, s49, s54")
    a("s_mov_b32 s19, 0x20000"); a("s_mov_b32 s23, 0x20000")
    a("s_cmp_ge_u32 s3, 4"); a("s_cbranch_scc1 L_A")

    def cb128(d, t):
        if cfg.g2map == "2x16":
            a("s_bfe_u32 %s, s2, 0x40003" % d); a("s_lshl_b32 %s, %s, 7" % (d, d))
        else:
            a("s_bfe_u32 %s, s2, 0x30003" % d); a("s_bfe_u32 %s, s2, 0x10002" % t); a("s_lshl_b32 %s, %s, 3" % (t, t))
            a("s_add_u32 %s, %s, %s" % (d, d, t)); a("s_lshl_b32 %s, %s, 7" % (d, d))
    def rb2(d, t):
        if cfg.g2map == "2x16":
            a("s_and_b32 %s, s2, 7" % d); a("s_lshl_b32 %s, %s, 1" % (d, d)); a("s_lshr_b32 %s, s2, 7" % t); a("s_add_u32 %s, %s, %s" % (d, d, t))
        else:
            a("s_and_b32 %s, s2, 3" % d); a("s_lshl_b32 %s, %s, 2" % (d, d)); a("s_lshr_b32 %s, s2, 6" % t); a("s_add_u32 %s, %s, %s" % (d, d, t))
    def srd_rest():
        a("s_mov_b32 s27, 0x20000"); a("s_mov_b32 s31, 0x20000"); a("s_mov_b32 s35, 0x20000"); a("s_mov_b32 s39, 0x20000")
        a("s_mov_b32 s28, s14"); a("s_mov_b32 s29, s15"); a("s_mov_b32 s30, 0x10000000")
        cb128("s46", "s47")
        a("s_add_u32 s32, s10, s46"); a("s_addc_u32 s33, s11, 0"); a("s_sub_u32 s34, %d, s46" % (1024 * 2048))
        a("s_mov_b32 s36, s12"); a("s_mov_b32 s37, s13"); a("s_mov_b32 s38, %d" % (2048 * 2048))
        a("s_mov_b32 s40, 0x%x" % LOG2E); a("s_mov_b32 s41, 0x%x" % LOG2E)
        a("s_mov_b32 s42, 0x%x" % (LOG2E | 0x80000000)); a("s_mov_b32 s43, 0x%x" % (LOG2E | 0x80000000))

    def chip_prefetch(t0, dst, lab):
        a("s_cmp_gt_u32 s3, 1"); a("s_cbranch_scc1 %s" % lab)
        a("s_cmp_eq_u32 s3, 0")
        a("s_cselect_b32 s24, s6, s10"); a("s_cselect_b32 s25, s7, s11"); a("s_cselect_b32 s26, %d, %d" % (1024 * 6144, 0))
        a("s_cselect_b32 s46, 6144, 0"); a("s_max_u32 s26, s26, %d" % (1024 * 2048)); a("s_max_u32 s46, s46, 2048")
        a("v_lshrrev_b32 v%d, 4, v0" % t0); a("s_lshl_b32 s47, s2, 2"); a("v_add_u32 v%d, s47, v%d" % (t0, t0))
        a("v_mul_lo_u32 v%d, v%d, s46" % (t0, t0)); a("v_and_b32 v%d, 15, v0" % dst); a("v_lshl_add_u32 v%d, v%d, 7, v%d" % (t0, dst, t0))
        a.raw("buffer_load_dword v%d, v%d, s[24:27], 0 offen" % (dst, t0))
        a.label(lab)

    QUNIT = {0: 14, 1: 15, 2: 16, 3: 17, 4: 18, 5: 19, 6: 4, 7: 5, 8: 10, 9: 11, 10: 0, 11: 1, 12: 12, 13: 13, 14: 6, 15: 7}

    XR, WR, VQ, VX, VW, BWP = 10, 10, 14, 16, 20, 16
    BACC, BRING, BCAP = 32, 64, 96
    if cfg.rot == "r4":
        a("s_add_u32 s50, s53, s54"); a("s_and_b32 s50, s50, 1"); a("s_lshl_b32 s50, s50, 1")
        a("s_add_u32 s46, s51, s52"); a("s_and_b32 s46, s46, 1"); a("s_add_u32 s50, s50, s46"); a("s_lshl_b32 s50, s50, 2")
    elif cfg.rot == "r4b":
        a("s_add_u32 s50, s51, s52"); a("s_and_b32 s50, s50, 1"); a("s_lshl_b32 s50, s50, 1")
        a("s_add_u32 s46, s53, s54"); a("s_and_b32 s46, s46, 1"); a("s_add_u32 s50, s50, s46"); a("s_lshl_b32 s50, s50, 2")
    elif cfg.rot == "r2":
        a("s_add_u32 s50, s53, s54"); a("s_and_b32 s50, s50, 1"); a("s_lshl_b32 s50, s50, 3")
    elif cfg.rot == "x2":
        a("s_add_u32 s50, s51, s52"); a("s_and_b32 s50, s50, 1"); a("s_lshl_b32 s50, s50, 3")
    else:
        a("s_mov_b32 s50, 0")
    a("s_lshl_b32 s55, s3, 12"); a("s_lshl_b32 s56, s3, 11")
    a("v_lshrrev_b32 v3, 3, v0"); a("v_and_b32 v4, 7, v0")
    a("v_lshrrev_b32 v5, 4, v0")
    a("v_xor_b32 v6, v5, v4"); a("v_lshlrev_b32 v6, 4, v6")
    a("s_lshl_b32 s46, s3, 16")
    a("v_lshl_add_u32 v6, v3, 11, v6"); a("v_add_u32 v%d, s46, v6" % VX)
    a("v_xor_b32 v6, 64, v%d" % VX)
    a("v_add_u32 v%d, %d, v6" % (VX + 1, 8 * 2048 - 1024))
    a("v_add_u32 v%d, %d, v%d" % (VX + 2, 16 * 2048 - 2048, VX))
    a("v_add_u32 v%d, %d, v6" % (VX + 3, 24 * 2048 - 3072))
    a("v_and_b32 v5, 1, v5"); a("v_lshlrev_b32 v5, 1, v5"); a("v_xor_b32 v5, v5, v4"); a("v_lshlrev_b32 v5, 4, v5")
    a("v_mul_u32_u24 v6, 6144, v3")
    a("s_mul_i32 s46, s3, %d" % (16 * 6144))
    a("s_and_b32 s47, s49, 1"); a("s_lshl_b32 s47, s47, 7")
    a("s_add_u32 s57, s46, s47"); a("s_add_u32 s57, s57, 2048")
    a("s_xor_b32 s47, s47, 128"); a("s_add_u32 s46, s46, s47")
    a("v_add3_u32 v%d, v5, v6, s57" % VW)
    a("v_add3_u32 v%d, v5, v6, s46" % VQ)
    a("v_xor_b32 v7, 64, v%d" % VW); a("v_add_u32 v%d, %d, v7" % (VW + 1, 8 * 6144 - 1024))
    a("v_add_u32 v%d, 2048, v%d" % (VW + 2, VW)); a("v_add_u32 v%d, 2048, v%d" % (VW + 3, VW + 1))
    a("s_lshl_b32 s46, s48, 18"); a("s_mov_b32 s18, %d" % (128 * 2048))
    a("s_lshr_b32 s47, s49, 1"); a("s_lshl_b32 s47, s47, 8")
    a("s_sub_u32 s22, %d, s47" % (1024 * 6144))
    a("s_lshl_b32 s58, s50, 7"); a("s_mul_i32 s59, s50, %d" % (64 * 6144))
    a("s_add_u32 m0, s55, %d" % (2 * U * slot(0)))
    PFV = 12
    if cfg.rounds:
        assert cfg.rot == "none"
        a("s_lshr_b32 s51, s3, 1"); a("v_lshl_add_u32 v1, v3, 1, s51")
        a("s_lshl_b32 s51, s49, 3"); a("v_add_u32 v2, s51, v4"); a("v_lshlrev_b32 v2, 11, v2"); a("v_lshl_add_u32 v%d, v1, 7, v2" % PFV)
        a("s_lshl_b32 s51, s48, 2"); a("v_bfe_u32 v2, v0, 1, 2"); a("v_lshl_add_u32 v2, v1, 6, v2"); a("v_add_u32 v2, s51, v2")
        a("v_mul_u32_u24 v2, 6144, v2"); a("v_and_b32 v1, 1, v0"); a("v_lshl_add_u32 v2, v1, 11, v2")
        a("s_and_b32 s51, s49, 1"); a("s_lshl_b32 s51, s51, 7"); a("s_add_u32 s51, s51, 2048"); a("v_add_u32 v2, s51, v2")
        a("s_bitcmp0_b32 s3, 0"); a("s_cselect_b64 vcc, -1, 0"); a("s_cselect_b32 s61, 1, 3072")
        a("s_cselect_b32 s26, s18, s22"); a("s_mov_b32 s27, 0x20000")
        a("v_cndmask_b32 v%d, v2, v%d, vcc" % (PFV, PFV))
    a.raw("s_waitcnt lgkmcnt(0)")
    a("s_add_u32 s16, s4, s46"); a("s_addc_u32 s17, s5, 0")
    a("s_add_u32 s20, s6, s47"); a("s_addc_u32 s21, s7, 0")
    def pf_round(first, m):
        assert first + 2 * m <= 16
        a("s_mul_i32 s60, s61, %d" % (first * 128))
        if m < 8: a("s_mov_b64 exec, 0x%x" % ((1 << (8 * m)) - 1)) if m < 4 else a("s_mov_b32 exec_hi, 0")
        a.raw("buffer_load_dword v13, v%d, s[24:27], s60 offen" % PFV); a.vm.append((set(), "PF"))
        a("s_mov_b64 exec, -1")
    if cfg.rounds:
        a("s_bitcmp0_b32 s3, 0"); a("s_cselect_b32 s24, s16, s20"); a("s_cselect_b32 s25, s17, s21")
        for (t_, f_, m_) in cfg.rounds:
            if t_ == -1: pf_round(f_, m_)

    def kst(t):
        a("s_add_u32 s57, s50, %d" % t); a("s_and_b32 s57, s57, 15")
    def dma_stage(t, first=False):
        tag = "S%d" % t
        if not first:
            kst(t); a("s_add_u32 m0, s55, %d" % (2 * U * slot(t))); a("s_lshl_b32 s58, s57, 7"); a("s_mul_i32 s59, s57, %d" % (64 * 6144))
        for j in range(4): a("buffer_load_dwordx4 v%d, s[16:19], s58 offen offset:%d lds" % (VX + j, 1024 * j), tag=tag)
        for k in range(2):
            a("s_add_u32 m0, s56, %d" % ((6 + 2 * slot(t) + k) * U))
            for i in range(2): a("buffer_load_dwordx4 v%d, s[20:23], s59 offen offset:%d lds" % (VW + 2 * k + i, 1024 * i), tag=tag)
    def dma_q(t):
        kst(t); a("s_add_u32 m0, s56, %d" % (QUNIT[t] * U)); a("s_mul_i32 s59, s57, %d" % (64 * 6144))
        for i in range(2): a("buffer_load_dwordx4 v%d, s[20:23], s59 offen offset:%d lds" % (VQ + i, 1024 * i), tag="Q%d" % t)

    dma_stage(0, True)
    a.raw("s_load_dword s44, s[14:15], 0")
    dma_stage(1)
    stamp(a, cfg, 1)
    a("v_xor_b32 v7, 64, v%d" % VQ); a("v_add_u32 v%d, %d, v7" % (VQ + 1, 8 * 6144 - 1024))
    srd_rest()
    a("s_mov_b32 s10, 65536"); a("s_mov_b32 s11, 0x20000")
    xlane(a, XR, 1, 2)
    a("v_add_u32 v%d, s55, v%d" % (XR, XR)); a("v_add_u32 v%d, s55, v%d" % (XR + 1, XR + 1))
    a("v_lshlrev_b32 v9, 4, v0")
    wphi_lane(a, 8, 1, 2)
    a("s_and_b32 s46, s49, 1"); a("s_lshl_b32 s46, s46, 12"); a("s_xor_b32 s46, s46, 4096"); a("s_add_u32 s46, s46, %d" % (19 * U))
    a("v_add_u32 v8, s46, v8")
    a.raw("s_waitcnt lgkmcnt(0)")
    a("s_add_u32 s44, s44, 0x%x" % TAGC)
    def bx(s, ks, rt): return BCAP + 16 * s + 8 * ks + 4 * rt
    for t in range(16):
        a.bar(["S%d" % t])
        if t == 0: stamp(a, cfg, 2)
        if t == 4: stamp(a, cfg, 3)
        if t == 8: stamp(a, cfg, 4)
        if t == 15: stamp(a, cfg, 5)
        if t < NB:
            for ks in range(2):
                for rt in range(2): a(rd128(bx(t, ks, rt), XR + ks, 2 * U * slot(t) + 2048 * rt))
        if t == 0:
            a("s_lshr_b32 s46, s49, 1"); a("s_lshl_b32 s46, s46, 13"); a("s_add_u32 s46, s46, s56")
            a("s_add_u32 m0, s56, %d" % (19 * U))
            for i in range(2): a("buffer_load_dwordx4 v9, s[8:11], s46 offen offset:%d lds" % (1024 * i), tag="WP")
        if t + 2 < 16: dma_stage(t + 2)
        if t == cfg.pf_stage:
            chip_prefetch(1, 2, "L_pfB")
        for (t_, f_, m_) in (cfg.rounds or []):
            if t_ == t:
                assert t <= 10
                pf_round(f_, m_)
        if t == cfg.pfq_t:
            a("s_lshl_b32 s46, s48, 6"); a("s_lshl_b32 s47, s3, 4"); a("s_add_u32 s46, s46, s47"); a("v_add_u32 v3, s46, v0")
            a("v_mul_u32_u24 v3, 6144, v3"); a("s_and_b32 s46, s49, 1"); a("s_xor_b32 s46, s46, 1"); a("s_lshl_b32 s46, s46, 7")
            a("s_mov_b64 exec, 0xffff")
            a.raw("buffer_load_dword v1, v3, s[20:23], s46 offen"); a.vm.append((set(), "PF"))
            a("s_mov_b64 exec, -1")
        if t == cfg.pfo_t:
            rb2("s46", "s47"); a("s_lshl_b32 s46, s46, 17"); a("s_lshl_b32 s47, s3, 15"); a("s_add_u32 s46, s46, s47")
            a("v_lshlrev_b32 v3, 11, v0")
            a("s_mov_b64 exec, 0xffff")
            a.raw("buffer_load_dword v1, v3, s[32:35], s46 offen"); a.vm.append((set(), "PF"))
            a("s_mov_b64 exec, -1")
        if t == 13:
            wlane(a, WR, 3, 4)
            a("v_add_u32 v%d, %d, v%d" % (WR, QUNIT[0] * U, WR))
            for i in range(1, 4): a("v_xor_b32 v%d, %d, v%d" % (WR + i, 32 * i, WR))
            a("s_lshr_b32 s46, s3, 1"); a("s_mul_i32 s46, s46, %d" % (6 * U)); a("s_and_b32 s47, s3, 1"); a("s_lshl_b32 s47, s47, 13")
            a("s_add_u32 s46, s46, s47"); a("s_add_u32 s46, s46, %d" % (2 * U)); a("v_add_u32 v5, s46, v9")
            a("v_and_b32 v3, 15, v0"); a("v_lshlrev_b32 v6, 4, v3"); a("v_bfe_u32 v3, v0, 4, 1"); a("v_lshl_add_u32 v6, v3, 10, v6")
            a("v_lshrrev_b32 v3, 5, v0"); a("v_lshl_add_u32 v6, v3, 8, v6")
            a("v_lshrrev_b32 v4, 2, v0"); a("v_lshrrev_b32 v7, 4, v0"); a("v_xor_b32 v4, v4, v7"); a("v_and_b32 v4, 1, v4")
            a("v_lshlrev_b32 v3, 4, v3"); a("v_lshl_add_u32 v7, v4, 8, v3"); a("v_add_u32 v7, %d, v7" % U)
            a("s_lshl_b32 s46, s48, 2"); a("s_add_u32 s46, s46, s3"); a("s_xor_b32 s47, s49, 1")
            a("s_lshl_b32 s51, s46, 16"); a("s_lshl_b32 s54, s47, 12"); a("s_add_u32 s51, s51, s54"); a("s_add_u32 s51, s51, %d" % WS_O)
            a("s_lshl_b32 s52, s46, 7"); a("s_lshl_b32 s54, s47, 2"); a("s_add_u32 s52, s52, s54"); a("s_add_u32 s52, s52, %d" % WS_FL2)
            a("s_mov_b32 s53, 0x358637bd")
        if t == 13:
            for l in wphi_reads(BWP, 8, 0) + wphi_reads(BWP + 8, 8, 2048): a(l)
        if t == 14:
            for q in (0, 1, 10, 11): dma_q(q)
        if t == 15:
            for q in (12, 13, 2, 3, 4, 5): dma_q(q)
            if cfg.pf_wo_l2:
                assert cfg.g2map == "4x8"
                a("v_lshlrev_b32 v3, 11, v0"); a("s_lshr_b32 s46, s2, 6"); a("s_lshl_b32 s46, s46, 19"); a("s_lshl_b32 s47, s3, 17"); a("s_add_u32 s46, s46, s47")
                a.raw("buffer_load_dword v1, v3, s[32:35], s46 offen"); a.vm.append((set(), "PF"))
    stamp(a, cfg, 6)
    a.bar(["Q%d" % q for q in range(16)])
    stamp(a, cfg, 7)
    ev = {}
    def add(pos, f): ev.setdefault(pos, []).append(f)
    def c3a():
        a.bar(lg0=False); stamp(a, cfg, 8)
        for q in (14, 15, 6, 7, 8, 9): dma_q(q)
    def c3b():
        a.bar(["Q%d" % q for q in range(16)], lg0=False); stamp(a, cfg, 9)
    add(cfg.c3a, c3a); add(cfg.c3b, c3b)
    assert cfg.c3a < cfg.c3b == 48
    QPR = BCAP
    def c4():
        a.bar()
        for i in range(8): a(rd128(QPR + 4 * i, 5, 1024 * i))
    add(8 * NB + 3, c4)
    qstream(a, [QUNIT[t] for t in range(NB)], bx, BACC, BRING, WR, QUNIT[0] * U, ev, True)
    stamp(a, cfg, 10)
    for ct in range(4):
        for rt in range(2):
            for h in range(2):
                r = 16 * rt + 4 * ct + 2 * h
                a("v_pk_add_f32 %s, %s, %s" % (v(BACC + r, 2), v(BACC + r, 2), v(QPR + r, 2)))
    PQ = 96; QA = BACC
    l0 = pack_pair(64, QA, QA + 16, QA + 4, QA + 20) + softmax(64, BWP, 160, 176, 224, 80, PQ)
    l1 = pack_pair(72, QA + 8, QA + 24, QA + 12, QA + 28) + softmax(72, BWP + 8, 192, 208, 240, 84, PQ + 16)
    for x, y in zip(l0, l1): a(x); a(y)
    a("v_mov_b32 v3, s44"); a("v_mov_b32 v4, 0")
    stamp(a, cfg, 11)
    a.bar()
    stamp(a, cfg, 12)
    KF, ZF, NUM, DEN, OP = 160, 192, 32, 64, 128
    for e in range(2):
        for i in range(4): a(rd128(ZF + 16 * e + 4 * i, 7, 128 * e + 32 * i))
        for i in range(4): a(rd128(KF + 16 * e + 4 * i, 9, 4096 * e + 1024 * i))
    for e in range(2):
        for i in range(4): a(mf16(DEN + 4 * e, ZF + 16 * e + 4 * i, PQ + 16 * e + 4 * i, "0" if i == 0 else None))
        for i in range(4): a(mf32(NUM + 16 * e, KF + 16 * e + 4 * i, PQ + 16 * e + 4 * i, "0" if i == 0 else None))
    for e in range(2):
        d = DEN + 4 * e; nu = NUM + 16 * e
        a("v_add_f32 v%d, s53, v%d" % (d, d)); a("v_rcp_f32 v%d, v%d" % (d, d))
        for m_ in range(2):
            for j in range(4 * m_, 4 * m_ + 4): a("v_pk_mul_f32 %s, %s, %s op_sel_hi:[1,0]" % (v(nu + 2 * j, 2), v(nu + 2 * j, 2), v(d, 2)))
            for j in range(4 * m_, 4 * m_ + 4): a(cvt(OP + 8 * e + j, nu + 2 * j, nu + 2 * j + 1))
            a("buffer_store_dwordx4 %s, v6, s[28:31], s51 offen offset:%d sc1" % (v(OP + 8 * e + 4 * m_, 4), 2048 * e + 512 * m_))
    a.bar()
    stamp(a, cfg, 13)
    a.force(vm=0)
    a("s_mov_b64 exec, 1")
    a("buffer_store_dword v3, v4, s[28:31], s52 offen sc1")
    a("s_mov_b64 exec, -1")
    stamp(a, cfg, 14)
    a("s_mov_b32 s47, 1")
    a("s_branch L_G2")
    a.lg = []; a.vm = []

    a.label("L_A")
    XA, WA, WPK = 10, 14, 24
    KVR, SEL, PHO, PHT, VWO = 32, 36, 4, 40, 18
    KA, VA, XT, WF, CAP = 48, 80, 112, 128, 160
    if cfg.prioA: a("s_setprio %d" % cfg.prioA)
    a("s_sub_u32 s3, s3, 4")
    a("s_lshl_b32 s55, s3, 12"); a("s_lshl_b32 s56, s3, 11")
    a("s_and_b32 s52, s3, 1"); a("s_lshr_b32 s51, s3, 1")
    xlane(a, XA, 1, 2)
    a("s_xor_b32 s46, s55, 4096")
    a("v_add_u32 v%d, s46, v%d" % (XA + 2, XA)); a("v_add_u32 v%d, s46, v%d" % (XA + 3, XA + 1))
    a("v_add_u32 v%d, s55, v%d" % (XA, XA)); a("v_add_u32 v%d, s55, v%d" % (XA + 1, XA + 1))
    wlane(a, 16, 1, 2)
    a("s_lshl_b32 s46, s52, 6"); a("v_xor_b32 v%d, s46, v16" % WA)
    a("v_add_u32 v%d, %d, v%d" % (WA, 6 * U, WA)); a("v_xor_b32 v%d, 32, v%d" % (WA + 1, WA))
    wphi_lane(a, 17, 1, 2)
    a("s_and_b32 s46, s49, 1"); a("s_lshl_b32 s46, s46, 12")
    a("s_lshl_b32 s47, s52, 11"); a("s_add_u32 s46, s46, s47"); a("s_add_u32 s46, s46, %d" % (19 * U))
    a("v_add_u32 v17, s46, v17")
    a("v_lshlrev_b32 v9, 4, v0"); a("v_lshlrev_b32 v8, 2, v0")
    a("v_and_b32 v1, 15, v0"); a("v_lshlrev_b32 v1, 6, v1")
    a("v_lshrrev_b32 v2, 5, v0"); a("v_bfe_u32 v3, v0, 2, 2"); a("v_xor_b32 v2, v2, v3"); a("v_lshl_add_u32 v1, v2, 4, v1")
    a("v_lshrrev_b32 v2, 3, v0"); a("v_xor_b32 v2, v2, v0"); a("v_bfe_u32 v2, v2, 1, 1"); a("v_lshl_add_u32 v1, v2, 3, v1")
    a("s_lshl_b32 s54, s52, 13"); a("s_add_u32 s54, s54, %d" % (6 * U))
    a("s_add_u32 s46, s54, s56")
    a("v_add_u32 v20, s46, v1"); a("v_xor_b32 v21, 32, v20"); a("v_xor_b32 v22, 2048, v20"); a("v_xor_b32 v23, 2048, v21")
    a("s_mul_i32 s53, s52, %d" % (6 * U)); a("s_add_u32 s53, s53, %d" % (2 * U))
    a("s_add_u32 s46, s53, s56")
    ph_addr(a, PHO, 1, 2, "s46")
    a("v_and_b32 v1, 2, v0"); a("v_lshlrev_b32 v1, 2, v1")
    for g in range(4): a("v_xor_b32 v%d, v1, v%d" % (PHO + g, PHO + g))
    for g in range(4): a("v_xor_b32 v%d, 2048, v%d" % (PHT + g, PHO + g))
    a("v_lshrrev_b32 v1, 5, v0"); a("v_bfe_u32 v2, v0, 2, 2"); a("v_lshl_add_u32 v2, v1, 3, v2"); a("v_lshlrev_b32 v2, 6, v2")
    a("v_bfe_u32 v3, v0, 4, 1"); a("v_xor_b32 v3, v3, v1"); a("v_lshl_add_u32 v2, v3, 5, v2")
    a("v_and_b32 v3, 3, v0"); a("v_lshl_add_u32 v2, v3, 3, v2")
    a("v_and_b32 v3, 8, v0"); a("v_xor_b32 v2, v2, v3")
    a("v_xor_b32 v3, 16, v2"); a("v_add_u32 v3, 256, v3")
    a("s_lshl_b32 s46, s51, 13"); a("s_add_u32 s46, s46, s53")
    a("v_add_u32 v%d, s46, v2" % KVR); a("v_add_u32 v%d, s46, v3" % (KVR + 1)); a("v_add_u32 v%d, s54, v2" % (KVR + 2)); a("v_add_u32 v%d, s54, v3" % (KVR + 3))
    a("v_lshrrev_b32 v1, 2, v0"); a("v_lshrrev_b32 v2, 4, v0"); a("v_xor_b32 v1, v1, v2"); a("v_and_b32 v1, 1, v1")
    a("v_subrev_u32 v1, 1, v1"); a("v_and_b32 v%d, 0x3f803f80, v1" % SEL)
    for i in range(1, 4): a("v_mov_b32 v%d, v%d" % (SEL + i, SEL))
    a("v_and_b32 v1, 31, v0"); a("v_lshlrev_b32 v1, 4, v1"); a("v_lshrrev_b32 v2, 5, v0"); a("v_lshl_add_u32 v44, v2, 13, v1")
    a("v_lshrrev_b32 v1, 4, v0"); a("v_lshlrev_b32 v1, 1, v1"); a("v_and_b32 v2, 7, v0"); a("v_xor_b32 v1, v1, v2"); a("v_lshlrev_b32 v1, 4, v1")
    a("v_lshrrev_b32 v2, 3, v0"); a("v_lshl_add_u32 v1, v2, 11, v1"); a("s_lshl_b32 s46, s3, 15")
    a("v_add_u32 v%d, s46, v1" % VWO); a("v_add_u32 v%d, %d, v%d" % (VWO + 1, 8 * 2048 - 1024, VWO))
    a("s_mul_i32 s46, s51, %d" % (6 * U)); a("s_lshl_b32 s47, s52, 13"); a("s_add_u32 s46, s46, s47"); a("s_add_u32 s46, s46, %d" % (2 * U))
    a("v_add_u32 v45, s46, v9")
    a("s_lshl_b32 s46, s52, 1"); a("s_add_u32 s46, s46, s51"); a("s_lshl_b32 s47, s49, 2"); a("s_add_u32 s46, s46, s47")
    a("s_lshl_b32 s57, s46, 15"); a("s_lshl_b32 s47, s48, 9"); a("s_add_u32 s57, s57, s47"); a("s_add_u32 s57, s57, %d" % WS_P1)
    a("s_add_u32 s50, s57, 16384")
    a("s_lshl_b32 s58, s46, 11"); a("s_lshl_b32 s47, s48, 7"); a("s_add_u32 s58, s58, s47"); a("s_add_u32 s58, s58, %d" % WS_Z1)
    a("s_lshl_b32 s60, s46, 7"); a("s_lshl_b32 s47, s48, 2"); a("s_add_u32 s60, s60, s47"); a("s_add_u32 s60, s60, %d" % WS_FL1)
    for l in ["s_lshl_b32 s47, s49, 2", "s_lshr_b32 s46, s48, 2", "s_add_u32 s47, s47, s46",
           "s_lshl_b32 s16, s47, 7", "s_add_u32 s16, s16, %d" % WS_FL1,
           "s_lshl_b32 s17, s47, 11", "s_bfe_u32 s46, s48, 0x10001", "s_lshl_b32 s46, s46, 6", "s_add_u32 s17, s17, s46",
           "s_and_b32 s46, s48, 1", "s_lshl_b32 s46, s46, 4", "s_add_u32 s17, s17, s46",
           "s_lshl_b32 s46, s3, 2", "s_add_u32 s17, s17, s46", "s_add_u32 s17, s17, %d" % WS_Z1,
           "s_lshl_b32 s47, s49, 4", "s_add_u32 s47, s47, s48",
           "s_lshl_b32 s18, s47, 13", "s_lshl_b32 s46, s3, 7", "s_add_u32 s18, s18, s46", "s_add_u32 s18, s18, %d" % WS_P1,
           "s_add_u32 s20, s18, 4096",
           "s_lshl_b32 s22, s47, 10", "s_lshl_b32 s46, s3, 8", "s_add_u32 s22, s22, s46", "s_add_u32 s22, s22, %d" % WS_P2,
           "s_xor_b32 s24, s49, 1", "s_lshl_b32 s24, s24, 14", "s_add_u32 s24, s24, s55", "s_add_u32 s24, s24, %d" % WS_P2,
           "s_lshl_b32 s21, s3, 6", "s_add_u32 s21, s21, %d" % U]: a(l)
    assert not cfg.pfx and not cfg.codepf and cfg.pf_stage == -1
    a.raw("s_waitcnt lgkmcnt(0)")
    a.raw("s_load_dword s44, s[14:15], 0")
    srd_rest()
    if cfg.pf_stage == -2: chip_prefetch(1, 46, "L_pfA")
    def pfx_issue():
        a.raw("buffer_load_dword v46, v47, s[24:27], 0 offen")
    if cfg.pfx:
        assert cfg.rot in ("none", "r2", "x2")
        if cfg.rot == "r2":
            a("s_bfe_u32 s46, s2, 0x10003"); a("s_bfe_u32 s47, s2, 0x10006"); a("s_xor_b32 s46, s46, s47"); a("s_lshl_b32 s46, s46, 3")
        elif cfg.rot == "x2":
            a("s_bfe_u32 s46, s2, 0x10000"); a("s_bfe_u32 s47, s2, 0x10001"); a("s_xor_b32 s46, s46, s47"); a("s_lshl_b32 s46, s46, 3")
        else:
            a("s_mov_b32 s46, 0")
        a("s_lshl_b32 s47, s51, 3"); a("s_add_u32 s46, s46, s47"); a("s_add_u32 s46, s46, %d" % cfg.pfx0)
        a("v_lshrrev_b32 v1, 3, v0"); a("v_add_u32 v1, s46, v1"); a("v_and_b32 v1, 15, v1")
        a("s_cmp_eq_u32 s52, 0"); a("s_cbranch_scc0 L_pfxw")
        a("s_lshl_b32 s46, s48, 7"); a("s_lshl_b32 s47, s49, 3"); a("s_add_u32 s46, s46, s47")
        a("v_and_b32 v2, 7, v0"); a("v_add_u32 v2, s46, v2"); a("v_lshlrev_b32 v2, 11, v2"); a("v_lshl_add_u32 v47, v1, 7, v2")
        a("s_mov_b32 s24, s4"); a("s_mov_b32 s25, s5"); a("s_mov_b32 s26, %d" % (2048 * 2048))
        a("s_branch L_pfxd")
        a.label("L_pfxw")
        a("s_lshl_b32 s46, s48, 2"); a("v_bfe_u32 v2, v0, 1, 2"); a("v_lshl_add_u32 v2, v1, 6, v2"); a("v_add_u32 v2, s46, v2")
        a("v_mul_u32_u24 v2, 6144, v2"); a("v_and_b32 v3, 1, v0"); a("v_lshl_add_u32 v2, v3, 11, v2")
        a("s_lshl_b32 s46, s49, 7"); a("s_add_u32 s46, s46, 2048"); a("v_add_u32 v47, s46, v2")
        a("s_mov_b32 s24, s6"); a("s_mov_b32 s25, s7"); a("s_mov_b32 s26, %d" % (1024 * 6144))
        a.label("L_pfxd")
        if cfg.pfx == 1: pfx_issue()
        else:
            a("s_cmp_eq_u32 s51, 0"); a("s_cbranch_scc0 L_pfx1"); pfx_issue(); a.label("L_pfx1")
    if cfg.codepf:
        a.raw("s_getpc_b64 s[16:17]")
        a.lines.append("L_pcref:")
        a.raw("s_sub_u32 s16, s16, L_pcref-%s" % NAME); a.raw("s_subb_u32 s17, s17, 0"); a.raw("s_mov_b32 s18, L_end-%s" % NAME)
        a("s_lshl_b32 s46, s3, 13"); a("v_lshlrev_b32 v1, 7, v0")
        a.raw("buffer_load_dword v46, v1, s[16:19], s46 offen")
    a.raw("s_waitcnt lgkmcnt(0)")
    a("s_add_u32 s44, s44, 0x%x" % TAGC)

    def xo(n, i):
        t, ks = n >> 1, n & 1
        if t >= NB: return CAP + 16 * (t - NB) + 8 * ks + 4 * i
        return CAP + 16 * (NA - 1) + 8 * ks + 4 * i
    def xf(n, i): return xo(n, i) if i < 2 else XT + 8 * (n & 1) + 4 * (i - 2)
    def wf(n, j): return WF + 16 * (n & 1) + 4 * j
    def reads(n):
        t, ks = n >> 1, n & 1; sl = slot(t)
        def rx(i): return rd128(xf(n, i), XA + 2 * (i >> 1) + ks, 2 * U * sl + 2048 * (i & 1))
        def rw(j): return [trd(wf(n, j) + 2 * tt, WA + (j & 1), 2 * U * sl + U * (j >> 1) + 4096 * ks + 512 * tt) for tt in range(2)]
        return [rx(0)] + rw(0) + [rx(1), rx(2), rx(3)] + rw(1) + rw(2) + rw(3)
    def accK(i, j): return KA + 8 * i + 4 * j
    def accV(i, j): return VA + 8 * i + 4 * j
    def mm(n):
        return [mf16(accK(i, j) if j < 2 else accV(i, j - 2), wf(n, j), xf(n, i), "0" if n == 0 else None) for j in range(4) for i in range(4)]
    extra = {6: wphi_reads(WPK, 17, 0)}
    a.bar()
    stamp(a, cfg, 1)
    for r in reads(0): a(r)
    TO, TW = WF, WF + 16
    for n in range(30):
        m = mm(n); r = reads(n + 1)
        if n % 2 == 0:
            r = r + extra.get(n, [])
            for i in range(16):
                a(m[i])
                if i < len(r): a(r[i])
        else:
            for i in range(16):
                if i == 4:
                    a.bar()
                    if n == 1 and cfg.pfx == 2:
                        a("s_cmp_eq_u32 s51, 1"); a("s_cbranch_scc0 L_pfx2"); pfx_issue(); a.label("L_pfx2")
                    if n == 15: stamp(a, cfg, 2)
                    if n == 29: stamp(a, cfg, 3)
                a(m[i])
                if i >= 4: a(r[i - 4])
    po = pack_pair(TO, accK(2, 0), accK(3, 0), accK(2, 1), accK(3, 1))
    pw = pack_pair(TW, accK(0, 0), accK(1, 0), accK(0, 1), accK(1, 1))
    m30 = mm(30); m31 = mm(31); r = reads(31)
    for i in range(12): a(m30[i]); a(r[i])
    for x in [m31[2], m31[3], m31[6], m31[7], m31[0], m31[1], m31[4], m31[5]]: a(x)
    tail = m30[12:] + m31[8:]
    fill = po + pw
    k = 0
    for i, x in enumerate(tail):
        a(x)
        if i >= 1:
            for _ in range(2):
                if k < len(fill): a(fill[k]); k += 1
    while k < len(fill): a(fill[k]); k += 1
    stamp(a, cfg, 4)
    s0 = softmax(TO, WPK, KA, XT, WF, 10, WF)
    s1 = softmax(TW, WPK, KA + 16, VA + 16, WF + 16, (14, 2), WF + 16)
    vp = [cvt(VA + j, VA + 2 * j, VA + 2 * j + 1) for j in range(16)]
    vw = ["ds_write_b64 v%d, %s offset:%d" % (20 + j + 2 * (i >> 1), v(VA + 4 * i + 2 * j, 2), 1024 * (i & 1)) for i in range(4) for j in range(2)]
    def with_writes(L, OUT, AD):
        out = []
        for l in L:
            out.append(l)
            m_ = re.match(r"v_cvt_pk_bf16_f32 v(\d+),", l)
            if m_:
                k_ = int(m_.group(1)) - OUT
                if 0 <= k_ < 16 and k_ & 1:
                    out.append("ds_write_b64 v%d, %s offset:%d" % (AD + ((k_ & 7) >> 1), v(OUT + k_ - 1, 2), U * (k_ >> 3)))
        return out
    s0w = with_writes(s0[2:], WF, PHT); s1w = with_writes(s1[2:], WF + 16, PHO)
    vpw = []
    for i in range(4):
        for j in range(2):
            n_ = 2 * i + j
            vpw += [vp[2 * n_], vp[2 * n_ + 1], vw[n_]]
    for l in s0[:2] + s1[:2] + vpw[:12]: a(l)
    lead = vpw[12:] + [None] * max(0, cfg.stag - 12)
    y = lead + s1w
    for i in range(max(len(s0w), len(y))):
        if i < len(s0w): a(s0w[i])
        if i < len(y) and y[i]: a(y[i])
    stamp(a, cfg, 5)
    a.bar()
    stamp(a, cfg, 6)
    FP, FV, KV, ZZ, KP = 48, 80, 128, 144, 148
    def kvr(ks):
        return [trd(FP + 4 * ks, KVR, 1024 * ks), trd(FP + 4 * ks + 2, KVR + 1, 1024 * ks), trd(FV + 4 * ks, KVR + 2, 1024 * ks), trd(FV + 4 * ks + 2, KVR + 3, 1024 * ks)]
    for ks in range(4):
        for l in kvr(ks): a(l)
    for ks in range(8):
        a(mf32(KV, FP + 4 * ks, FV + 4 * ks, "0" if ks == 0 else None))
        if ks + 4 < 8:
            for l in kvr(ks + 4): a(l)
    for ks in range(8): a(mf16(ZZ, SEL, FP + 4 * ks, "0" if ks == 0 else None))
    a("v_mov_b32 v14, v16")
    for i in range(1, 4): a("v_xor_b32 v%d, %d, v14" % (14 + i, 32 * i))
    for ks in range(2):
        for j in range(4): a(cvt(KP + 4 * ks + j, KV + 8 * ks + 2 * j, KV + 8 * ks + 2 * j + 1))
        a("buffer_store_dwordx4 %s, v44, s[28:31], %s offen sc1" % (v(KP + 4 * ks, 4), "s57" if ks == 0 else "s50"))
    a("s_mov_b32 exec_hi, 0")
    a("buffer_store_dword v%d, v8, s[28:31], s58 offen sc1" % ZZ)
    a("s_mov_b32 exec_hi, -1")
    stamp(a, cfg, 7)
    a.bar()
    QAA, QR = 48, 80
    fl = ["v_and_b32 v1, 15, v0", "v_lshlrev_b32 v10, 2, v1",
          "v_lshrrev_b32 v2, 3, v0", "v_and_b32 v3, 7, v0", "v_lshlrev_b32 v4, 4, v3", "v_lshl_add_u32 v11, v2, 9, v4",
          "v_bfe_u32 v5, v0, 4, 1", "v_lshlrev_b32 v6, 5, v5", "v_lshl_add_u32 v12, v1, 7, v6",
          "v_lshl_add_u32 v13, v5, 7, v4",
          "v_and_b32 v1, 1, v0", "v_lshlrev_b32 v1, 4, v1", "v_mov_b32 v2, 0x3f80",
          "v_lshlrev_b32 v1, v1, v2", "v_bfe_u32 v2, v0, 1, 2", "v_mov_b32 v135, s44"]
    for j in range(4):
        fl += ["v_cmp_eq_u32 vcc, %d, v2" % j, "v_cndmask_b32 v%d, 0, v1, vcc" % (SEL + j)]
    fl += ["v_mov_b32 v2, 0",
           "v_lshrrev_b32 v5, 4, v0", "v_bfe_u32 v6, v0, 3, 1", "v_lshlrev_b32 v6, 3, v6",
           "v_lshl_add_u32 v20, v5, 7, v4", "v_add3_u32 v20, v20, v6, s56",
           "v_lshl_add_u32 v21, v5, 1, v6", "v_add_u32 v21, s21, v21"]
    evA = {}
    for i, l in enumerate(fl): evA.setdefault(7 + (i + 1) // 2, []).append(lambda l=l: a(l))
    assert 7 + len(fl) // 2 < cfg.flagpos <= 32
    def dma_wo(j):
        a("s_add_u32 m0, s56, %d" % ((4 + j) * U)); a("s_mov_b32 s59, %d" % (j * 64 * 2048))
        for i in range(2): a("buffer_load_dwordx4 v%d, s[32:35], s59 offen offset:%d lds" % (VWO + i, 1024 * i), tag="WO")
    wo1 = [10, 11, 12, 13, 14]
    wo2 = [15, 8, 9, 0, 1, 2, 3, 6, 7][:cfg.wo_c4]
    def x1():
        a.force(vm=0)
        a("s_mov_b64 exec, 1")
        a("buffer_store_dword v135, v2, s[28:31], s60 offen sc1")
        a("s_mov_b64 exec, -1")
        stamp(a, cfg, 8)
        spin_head(a, "L_f1")
        a.raw("buffer_load_dword v112, v10, s[28:31], s16 offen sc1"); a.raw("s_waitcnt vmcnt(0)"); a.vm = []
        a.raw("v_cmp_ne_u32 vcc, s44, v112")
        spin_tail(a, "L_f1")
        stamp(a, cfg, 9)
        R = 112
        a("buffer_load_dwordx4 %s, v11, s[28:31], s18 offen sc1" % v(R, 4))
        a("buffer_load_dwordx4 %s, v11, s[28:31], s20 offen sc1" % v(R + 4, 4))
        a("buffer_load_dword v130, v12, s[28:31], s17 offen sc1")
        a(mf16(R + 8, SEL, R, "0")); a(mf16(R + 8, SEL, R + 4))
        for k in (1, 2, 4, 8): a("v_add_f32_dpp v130, v130, v130 row_ror:%d row_mask:0xf bank_mask:0xf" % k)
        a(cvt(134, 130, 130))
        for i in range(4): a("v_add_f32_dpp v%d, v%d, v%d row_ror:8 row_mask:0xf bank_mask:0xf" % (R + 8 + i, R + 8 + i, R + 8 + i))
        a(cvt(132, R + 8, R + 9)); a(cvt(133, R + 10, R + 11))
        a("s_mov_b64 exec, 0x00ff00ff")
        a("buffer_store_dwordx4 v[132:135], v13, s[28:31], s22 offen sc1")
        a("s_mov_b64 exec, -1")
        stamp(a, cfg, 10)
        a.bar(lg0=False)
        for j in wo1: dma_wo(j)
        stamp(a, cfg, 11)
    evA.setdefault(cfg.flagpos, []).append(x1)
    qstream(a, [QUNIT[t] for t in range(NB, 16)], lambda s, ks, rt: CAP + 16 * s + 8 * ks + 4 * rt, QAA, QR, 14, 0, evA, True)
    for i in range(8): a("ds_write_b128 v45, %s offset:%d" % (v(QAA + 4 * i, 4), 1024 * i))
    a.bar()
    stamp(a, cfg, 12)
    a("ds_write_b32 v8, v2 offset:%d" % (U + 256))
    G = 136
    spin_head(a, "L_p2")
    for g in range(4): a.raw("buffer_load_dwordx4 %s, v9, s[28:31], s24 offen offset:%d sc1" % (v(G + 4 * g, 4), 1024 * g))
    a.raw("s_waitcnt vmcnt(0)"); a.vm = []
    a.raw("v_xor_b32 v3, s44, v%d" % (G + 3))
    for g in range(1, 4): a.raw("v_bitop3_b32 v3, v3, v%d, v135 bitop3:0xf6" % (G + 4 * g + 3))
    a.raw("v_cmp_ne_u32 vcc, 0, v3")
    spin_tail(a, "L_p2")
    stamp(a, cfg, 13)
    for g in range(4):
        a("ds_write_b64 v20, %s offset:%d" % (v(G + 4 * g, 2), g * 512))
        a("ds_write_b16 v21, v%d offset:%d" % (G + 4 * g + 2, g * 16))
    for j in wo2: dma_wo(j)
    stamp(a, cfg, 14)
    a.bar()
    a.bar()
    for j in range(16):
        if j not in wo1 + wo2: dma_wo(j)
    a("s_mov_b32 s47, 0")
    if cfg.prioA: a("s_setprio 0")
    a.force(vm=0)

    a.label("L_G2")
    a.lg = []; a.vm = []
    stamp(a, cfg, 15)
    rb2("s48", "s46")
    a("s_lshl_b32 s46, s48, 2"); a("s_add_u32 s46, s46, s3")
    a("s_lshl_b32 s52, s46, 7"); a("s_lshl_b32 s51, s47, 5"); a("s_add_u32 s52, s52, s51"); a("s_add_u32 s52, s52, %d" % WS_FL2)
    a("s_lshl_b32 s53, s46, 16"); a("s_lshl_b32 s51, s47, 15"); a("s_add_u32 s53, s53, s51"); a("s_add_u32 s53, s53, %d" % WS_O)
    a("v_and_b32 v10, 7, v0"); a("v_lshlrev_b32 v10, 2, v10")
    a("s_lshl_b32 s51, s47, 10"); a("v_add_u32 v11, s51, v9"); a("v_xor_b32 v12, 1024, v11")
    a("v_lshrrev_b32 v1, 5, v0"); a("v_bfe_u32 v2, v0, 2, 3"); a("v_lshl_add_u32 v1, v1, 4, v2"); a("v_lshlrev_b32 v1, 7, v1")
    a("v_bfe_u32 v2, v0, 3, 2"); a("v_lshl_add_u32 v1, v2, 5, v1"); a("v_and_b32 v2, 3, v0"); a("v_lshl_add_u32 v1, v2, 3, v1")
    a("s_lshl_b32 s51, s47, 16"); a("s_add_u32 s51, s51, %d" % (4 * U)); a("v_add_u32 v14, s51, v1")
    for i in range(1, 4): a("v_xor_b32 v%d, %d, v14" % (14 + i, 32 * i))
    a.raw("s_barrier")
    stamp(a, cfg, 16)
    OF, ACC, RING = 128, 48, 80
    D = 7
    def rdf(f):
        if f < 64:
            n, ct = f >> 2, f & 3
            for t in range(2): a(trd(RING + 4 * (f % 8) + 2 * t, 14 + ct, n * 4096 + t * 1024))
    for f in range(D): rdf(f)
    a("s_lshl_b32 s51, s3, 1"); a("s_add_u32 s51, s51, s47"); a("s_lshl_b32 s54, s51, 12")
    a("v_add_u32 v18, s54, v9"); a("v_xor_b32 v19, 4096, v18")
    a("s_lshl_b32 s54, s48, 18"); a("s_lshl_b32 s51, s51, 15"); a("s_add_u32 s54, s54, s51")
    cb128("s51", "s46"); a("s_add_u32 s54, s54, s51")
    a("v_and_b32 v1, 15, v0"); a("v_lshlrev_b32 v20, 11, v1"); a("v_bfe_u32 v1, v0, 4, 1"); a("v_lshl_add_u32 v20, v1, 5, v20")
    a("v_lshrrev_b32 v1, 5, v0"); a("v_lshl_add_u32 v20, v1, 4, v20")
    spin_head(a, "L_f2")
    a.raw("buffer_load_dword v1, v10, s[28:31], s52 offen sc1"); a.raw("s_waitcnt vmcnt(0)")
    a.raw("v_cmp_ne_u32 vcc, s44, v1")
    spin_tail(a, "L_f2")
    stamp(a, cfg, 17)
    def old(n, i):
        if n < 16:
            a("buffer_load_dwordx4 %s, v%d, s[28:31], s53 offen offset:%d sc1" % (v(OF + 8 * n + 4 * i, 4), 11 + i, 2048 * (n & 1)))
            if i == 0 and n & 1 and n < 15: a("s_add_u32 s53, s53, 4096")
    for n in range(cfg.g2_pre): old(n, 1); old(n, 0)
    for f in range(64):
        n, ct = f >> 2, f & 3
        for i in (1, 0): a(mf16(ACC + 16 * i + 4 * ct, RING + 4 * (f % 8), OF + 8 * n + 4 * i, "0" if n == 0 else None))
        rdf(f + D)
        if ct == 0: old(n + cfg.g2_pre, 1)
        if ct == 2: old(n + cfg.g2_pre, 0)
    stamp(a, cfg, 18)
    for ct in range(4): a("ds_write_b128 v18, %s offset:%d" % (v(ACC + 16 + 4 * ct, 4), 1024 * ct))
    a.bar()
    for ct in range(4): a(rd128(RING + 4 * ct, 19, 1024 * ct))
    for j in range(2):
        for ct in (2 * j, 2 * j + 1):
            for h in range(2): a("v_pk_add_f32 %s, %s, %s" % (v(ACC + 4 * ct + 2 * h, 2), v(ACC + 4 * ct + 2 * h, 2), v(RING + 4 * ct + 2 * h, 2)))
        o = 112 + 4 * j
        for k in range(4): a(cvt(o + k, ACC + 8 * j + 2 * k, ACC + 8 * j + 2 * k + 1))
        a("v_permlane16_swap_b32 v%d, v%d" % (o, o + 2)); a("v_permlane16_swap_b32 v%d, v%d" % (o + 1, o + 3))
        a("buffer_store_dwordx4 %s, v20, s[36:39], s54 offen offset:%d" % (v(o, 4), 64 * j))
    a("s_or_b32 s46, s2, s3"); a("s_or_b32 s46, s46, s47")
    a("s_cmp_lg_u32 s46, 0"); a("s_cbranch_scc1 L_noep")
    a("v_mov_b32 v1, s44"); a("v_mov_b32 v2, 0"); a("s_mov_b64 exec, 1")
    a("buffer_store_dword v1, v2, s[28:31], 0 offen sc1")
    a("s_mov_b64 exec, -1")
    a.label("L_noep")
    if cfg.stamps:
        a.raw("s_waitcnt vmcnt(0)")
        stamp(a, cfg, 19)
        a.raw("s_waitcnt lgkmcnt(0)")
        a("s_cmp_lg_u32 s3, 0"); a("s_cbranch_scc1 L_end")
        a("s_mul_i32 s60, s2, %d" % (NST * 8)); a("s_lshl_b32 s61, s47, 16"); a("s_add_u32 s60, s60, s61"); a("s_add_u32 s60, s60, %d" % WS_ST)
        a("v_mov_b32 v2, s60"); a("s_mov_b64 exec, 1")
        for i in range(NST):
            a("v_mov_b32 v4, s%d" % (ST0 + 2 * i)); a("v_mov_b32 v5, s%d" % (ST0 + 1 + 2 * i))
            a.raw("buffer_store_dwordx2 v[4:5], v2, s[28:31], 0 offen offset:%d" % (8 * i)); a.raw("s_waitcnt vmcnt(0)")
    a.label("L_end")
    a.raw("s_endpgm")
    return a

def build(cfg, path):
    a = gen(cfg)
    lines = hazard.fix(a.lines, verbose=False)
    for p in hazard.check_backedges(lines): print("BACKEDGE HAZARD:", p)
    out = HEADER + "; @launch grid=(256,1,1) block=(512,1,1) lds=163840\n"
    out += '.amdgcn_target "amdgcn-amd-amdhsa--gfx950"\n.text\n' + "\n".join(lines) + "\n"
    out += '.section .rodata,"a"\n.p2align 6\n' + kd(NAME, 256, 102 if cfg.stamps else 64, 256)
    open(path, "w").write(out)

def mk(path, **kw):
    c = Cfg()
    for k, x in kw.items():
        assert hasattr(c, k), k
        setattr(c, k, x)
    build(c, path)

if __name__ == "__main__":
    mk("v5.s")
    B = dict(stamps=True)
    mk("v5a_st.s", **B)
    mk("v5b_st.s", rot="r4b", **B)
    mk("v5c_st.s", rot="r4b", flagpos=25, **B)
    mk("v5d_st.s", rot="r4b", stag=12, **B)
    mk("v5e_st.s", rot="r4b", wo_c4=5, **B)
    mk("v5f_st.s", rot="r4b", stamps="cyc")
```

```python
import sys, re
from asmlib import *
import hazard
from gen3 import (E, mf16, mf32, trd, rd128, cvt, pack_pair, softmax, ph_addr, wlane, xlane, wphi_lane,
                  wphi_reads, spin_head, spin_tail, stamp, NAME, LOG2E, TAGC, NST, ST0, U, WS_ST)

WS_P2  = 0x40000
WS_F1  = 0x80000
WS_F2  = 0x88000
WS_F3  = 0x90000
WS_P1  = 0x400000
WS_O   = 0x800000
TMASK = 0xBFFFBFFF

class Cfg:
    stamps = False
    cnt = False
    pfwo = 'c1'
    smst = None
    pace_m = None
    pace_t0 = 2
    pace_q = None
    pace_p = None
    pace_o = None
    warm = True
    f1pos = 24
    hlp = 1
    hpx = 3
    bst = None
    ast = None
    pfpat = 'row'
    prest = -1
    amp = None
    scramble = False
    outsc = "sc0 sc1"
    rot = "r4b"
    prioA = 0
    prio1 = 1
    prio2 = 1
    prio3 = 1
    early = 0
    c2w = 4
    c3a = 24
    g2_pre = 3
    stag = 40
    wo1 = 0
    c5b = True
    p1pos = 31
    touch = False
    q14 = 4
    q15 = 2
    qlate = 0
    c3bA = 30
    c3b = 44
    c4o = 3
    p1chk = 40
    wo0 = 4

def slot(t): return (t + 2) % 3

def qstream(a, units, xreg, ACC, RING, WR, base, events, first_c):
    D = 7
    frs = [(s, ks, ct) for s in range(len(units)) for ks in range(2) for ct in range(4)]
    st = {"base": base}
    def read(f, t):
        if t == 0:
            for ev in events.get(f, []): ev()
        if f >= len(frs): return
        s, ks, ct = frs[f]
        off = units[s] * U - st["base"]
        if off < 0 or off + U > 65536:
            nb = units[s] * U
            d = nb - st["base"]
            for i in range(4):
                a(("v_add_u32 v%d, %d, v%d" % (WR + i, d, WR + i)) if d > 0 else ("v_subrev_u32 v%d, %d, v%d" % (WR + i, -d, WR + i)))
            st["base"] = nb; off = 0
        a(trd(RING + 4 * (f % 8) + 2 * t, WR + ct, off + ks * 4096 + t * 512))
    for f in range(D): read(f, 0); read(f, 1)
    for f, (s, ks, ct) in enumerate(frs):
        for rt in range(2):
            a(mf16(ACC + 16 * rt + 4 * ct, RING + 4 * (f % 8), xreg(s, ks, rt), "0" if (first_c and f < 4) else None))
            read(f + D, rt)

def gen(cfg):
    a = E()
    NB = 10; NA = 6
    kernel_begin(a, NAME)
    a("s_cmp_ge_u32 s2, 256"); a("s_cbranch_scc1 L_end")
    a("s_load_dwordx8 s[4:11], s[0:1], 0")
    a("s_load_dwordx2 s[12:13], s[0:1], 32")
    a("s_load_dwordx2 s[14:15], s[0:1], 48")
    stamp(a, cfg, 0)
    if cfg.scramble:
        a("s_lshr_b32 s46, s2, 3"); a("s_lshr_b32 s47, s2, 5"); a("s_xor_b32 s46, s46, s47"); a("s_and_b32 s46, s46, 7"); a("s_xor_b32 s2, s2, s46")
    a("v_lshrrev_b32 v1, 6, v0"); a("v_and_b32 v0, 63, v0")
    a("s_and_b32 s51, s2, 1"); a("v_readfirstlane_b32 s3, v1")
    a("s_bfe_u32 s52, s2, 0x20001")
    a("s_bfe_u32 s53, s2, 0x30003")
    a("s_lshr_b32 s54, s2, 6")
    if cfg.hpx: a("s_xor_b32 s54, s54, %d" % cfg.hpx)
    a("s_lshl_b32 s48, s51, 3"); a("s_add_u32 s48, s48, s53")
    a("s_lshl_b32 s49, s52, 2"); a("s_add_u32 s49, s49, s54")
    a("s_mov_b32 s19, 0x20000"); a("s_mov_b32 s23, 0x20000")
    a("s_cmp_ge_u32 s3, 4"); a("s_cbranch_scc1 L_A")

    def cb128(d, t):
        a("s_bfe_u32 %s, s2, 0x30003" % d); a("s_bfe_u32 %s, s2, 0x10002" % t); a("s_lshl_b32 %s, %s, 3" % (t, t))
        a("s_add_u32 %s, %s, %s" % (d, d, t)); a("s_lshl_b32 %s, %s, 7" % (d, d))
    def rb2(d, t):
        a("s_and_b32 %s, s2, 3" % d); a("s_lshl_b32 %s, %s, 2" % (d, d)); a("s_lshr_b32 %s, s2, 6" % t); a("s_add_u32 %s, %s, %s" % (d, d, t))
    def srd_rest():
        a("s_mov_b32 s31, 0x20000"); a("s_mov_b32 s35, 0x20000"); a("s_mov_b32 s39, 0x20000")
        a("s_mov_b32 s28, s14"); a("s_mov_b32 s29, s15"); a("s_mov_b32 s30, 0x10000000")
        cb128("s46", "s47")
        a("s_add_u32 s32, s10, s46"); a("s_addc_u32 s33, s11, 0"); a("s_sub_u32 s34, %d, s46" % (1024 * 2048))
        a("s_mov_b32 s36, s12"); a("s_mov_b32 s37, s13"); a("s_mov_b32 s38, %d" % (2048 * 2048))
        a("s_mov_b32 s40, 0x%x" % LOG2E); a("s_mov_b32 s41, 0x%x" % LOG2E)
        a("s_mov_b32 s42, 0x%x" % (LOG2E | 0x80000000)); a("s_mov_b32 s43, 0x%x" % (LOG2E | 0x80000000))
    def mktag():
        a.raw("s_waitcnt lgkmcnt(0)")
        a("s_add_u32 s44, s44, 0x%x" % TAGC); a("s_and_b32 s44, s44, 0x%x" % TMASK)
    def count(idx):
        if cfg.cnt: a.raw("s_mov_b32 s%d, s45" % (ST0 + 2 * idx)); a.raw("s_mov_b32 s%d, 0" % (ST0 + 2 * idx + 1))

    QUNIT = {0: 12, 1: 13, 2: 14, 3: 15, 4: 16, 5: 17, 6: 18, 7: 19, 8: 10, 9: 11, 10: 0, 11: 1, 12: 4, 13: 5, 14: 6, 15: 7}

    XR, WR, VQ, VX, VW, BWP = 10, 10, 14, 16, 20, 16
    BACC, BRING, BCAP = 32, 64, 96
    if cfg.rot == "r4":
        a("s_add_u32 s50, s53, s54"); a("s_and_b32 s50, s50, 1"); a("s_lshl_b32 s50, s50, 1")
        a("s_add_u32 s46, s51, s52"); a("s_and_b32 s46, s46, 1"); a("s_add_u32 s50, s50, s46"); a("s_lshl_b32 s50, s50, 2")
    elif cfg.rot == "r4b":
        a("s_add_u32 s50, s51, s52"); a("s_and_b32 s50, s50, 1"); a("s_lshl_b32 s50, s50, 1")
        a("s_add_u32 s46, s53, s54"); a("s_and_b32 s46, s46, 1"); a("s_add_u32 s50, s50, s46"); a("s_lshl_b32 s50, s50, 2")
    elif isinstance(cfg.rot, tuple):
        first = True
        for c, r in zip(cfg.rot, ("s51", "s52", "s53", "s54")):
            if c:
                a("s_mul_i32 %s, %s, %d" % ("s50" if first else "s46", r, c))
                if not first: a("s_add_u32 s50, s50, s46")
                first = False
        a("s_and_b32 s50, s50, 15")
    else:
        a("s_mov_b32 s50, 0")
    a("s_lshl_b32 s55, s3, 12"); a("s_lshl_b32 s56, s3, 11")
    a("v_lshrrev_b32 v3, 3, v0"); a("v_and_b32 v4, 7, v0")
    a("v_lshrrev_b32 v5, 4, v0")
    a("v_xor_b32 v6, v5, v4"); a("v_lshlrev_b32 v6, 4, v6")
    a("s_lshl_b32 s46, s3, 16")
    a("v_lshl_add_u32 v6, v3, 11, v6"); a("v_add_u32 v%d, s46, v6" % VX)
    a("v_xor_b32 v6, 64, v%d" % VX)
    a("v_add_u32 v%d, %d, v6" % (VX + 1, 8 * 2048 - 1024))
    a("v_add_u32 v%d, %d, v%d" % (VX + 2, 16 * 2048 - 2048, VX))
    a("v_add_u32 v%d, %d, v6" % (VX + 3, 24 * 2048 - 3072))
    a("v_and_b32 v5, 1, v5"); a("v_lshlrev_b32 v5, 1, v5"); a("v_xor_b32 v5, v5, v4"); a("v_lshlrev_b32 v5, 4, v5")
    a("v_mul_u32_u24 v6, 6144, v3")
    a("s_mul_i32 s46, s3, %d" % (16 * 6144))
    a("s_and_b32 s47, s49, 1"); a("s_lshl_b32 s47, s47, 7")
    a("s_add_u32 s57, s46, s47"); a("s_add_u32 s57, s57, 2048")
    a("s_xor_b32 s47, s47, 128"); a("s_add_u32 s46, s46, s47")
    a("v_add3_u32 v%d, v5, v6, s57" % VW)
    a("v_add3_u32 v%d, v5, v6, s46" % VQ)
    a("v_xor_b32 v7, 64, v%d" % VW); a("v_add_u32 v%d, %d, v7" % (VW + 1, 8 * 6144 - 1024))
    a("v_add_u32 v%d, 2048, v%d" % (VW + 2, VW)); a("v_add_u32 v%d, 2048, v%d" % (VW + 3, VW + 1))
    a("s_lshl_b32 s46, s48, 18"); a("s_mov_b32 s18, %d" % (128 * 2048))
    a("s_lshr_b32 s47, s49, 1"); a("s_lshl_b32 s47, s47, 8")
    a("s_sub_u32 s22, %d, s47" % (1024 * 6144))
    a("s_lshl_b32 s58, s50, 7"); a("s_mul_i32 s59, s50, %d" % (64 * 6144))
    a("s_add_u32 m0, s55, %d" % (2 * U * slot(0)))
    if cfg.cnt: stamp(a, cfg, 4)
    a.raw("s_waitcnt lgkmcnt(0)")
    if cfg.cnt: stamp(a, cfg, 6)
    a("s_add_u32 s16, s4, s46"); a("s_addc_u32 s17, s5, 0")
    a("s_add_u32 s20, s6, s47"); a("s_addc_u32 s21, s7, 0")

    def kst(t):
        a("s_add_u32 s57, s50, %d" % t); a("s_and_b32 s57, s57, 15")
    def dma_stage(t, first=False):
        tag = "S%d" % t
        if not first:
            kst(t); a("s_add_u32 m0, s55, %d" % (2 * U * slot(t))); a("s_lshl_b32 s58, s57, 7"); a("s_mul_i32 s59, s57, %d" % (64 * 6144))
        pm = cfg.pace_m if t >= cfg.pace_t0 else None
        for j in range(4):
            a.wait(vm=pm)
            a("buffer_load_dwordx4 v%d, s[16:19], s58 offen offset:%d lds" % (VX + j, 1024 * j), tag=tag)
        for k in range(2):
            a("s_add_u32 m0, s56, %d" % ((6 + 2 * slot(t) + k) * U))
            for i in range(2):
                a.wait(vm=pm)
                a("buffer_load_dwordx4 v%d, s[20:23], s59 offen offset:%d lds" % (VW + 2 * k + i, 1024 * i), tag=tag)
    def dma_q(t):
        kst(t); a("s_add_u32 m0, s56, %d" % (QUNIT[t] * U)); a("s_mul_i32 s59, s57, %d" % (64 * 6144))
        for i in range(2):
            a.wait(vm=cfg.pace_q)
            a("buffer_load_dwordx4 v%d, s[20:23], s59 offen offset:%d lds" % (VQ + i, 1024 * i), tag="Q%d" % t)

    dma_stage(0, True)
    a.raw("s_load_dword s44, s[14:15], 0")
    dma_stage(1)
    stamp(a, cfg, 1)
    a("v_xor_b32 v7, 64, v%d" % VQ); a("v_add_u32 v%d, %d, v7" % (VQ + 1, 8 * 6144 - 1024))
    srd_rest()
    a("s_mov_b32 s10, 65536"); a("s_mov_b32 s11, 0x20000")
    xlane(a, XR, 1, 2)
    a("v_add_u32 v%d, s55, v%d" % (XR, XR)); a("v_add_u32 v%d, s55, v%d" % (XR + 1, XR + 1))
    a("v_lshlrev_b32 v9, 4, v0")
    wphi_lane(a, 8, 1, 2)
    a("s_and_b32 s46, s49, 1"); a("s_lshl_b32 s46, s46, 12"); a("s_xor_b32 s46, s46, 4096"); a("s_add_u32 s46, s46, %d" % (19 * U))
    a("v_add_u32 v8, s46, v8")
    mktag()
    def bx(s, ks, rt): return BCAP + 16 * s + 8 * ks + 4 * rt
    qorder = [0, 1, 2, 3, 10, 11, 4, 5, 6, 7]
    def pfw():
        a.wait(vm=cfg.pace_p)
        a.raw("buffer_load_dword v1, v3, s[32:35], s46 offen"); a.vm.append((set(), "PF"))
    def pfs(i0, i1):
        for i in range(i0, i1): a.raw("s_load_dwordx2 s[26:27], s[24:25], 0x%x" % ((i >> 2) * 2048 + (i & 3) * 256 + 124))
    for t in range(16):
        a.bar(["S%d" % t])
        if t == 0: stamp(a, cfg, 2)
        if t == 4 and not cfg.cnt: stamp(a, cfg, 3)
        if t == 8 and not cfg.cnt: stamp(a, cfg, 4)
        if t == 15: stamp(a, cfg, 5)
        if t < NB:
            for ks in range(2):
                for rt in range(2): a(rd128(bx(t, ks, rt), XR + ks, 2 * U * slot(t) + 2048 * rt))
        if t == 0:
            a("s_lshr_b32 s46, s49, 1"); a("s_lshl_b32 s46, s46, 13"); a("s_add_u32 s46, s46, s56")
            a("s_add_u32 m0, s56, %d" % (19 * U))
            for i in range(2): a("buffer_load_dwordx4 v9, s[8:11], s46 offen offset:%d lds" % (1024 * i), tag="WP")
        if t + 2 < 16: dma_stage(t + 2)
        if t == 13:
            wlane(a, WR, 3, 4)
            a("v_add_u32 v%d, %d, v%d" % (WR, QUNIT[0] * U, WR))
            for i in range(1, 4): a("v_xor_b32 v%d, %d, v%d" % (WR + i, 32 * i, WR))
            a("s_lshr_b32 s46, s3, 1"); a("s_mul_i32 s46, s46, %d" % (6 * U)); a("s_and_b32 s47, s3, 1"); a("s_lshl_b32 s47, s47, 13")
            a("s_add_u32 s46, s46, s47"); a("s_add_u32 s46, s46, %d" % (2 * U)); a("v_add_u32 v5, s46, v9")
            a("v_and_b32 v3, 15, v0"); a("v_lshlrev_b32 v6, 4, v3"); a("v_bfe_u32 v3, v0, 4, 1"); a("v_lshl_add_u32 v6, v3, 10, v6")
            a("v_lshrrev_b32 v3, 5, v0"); a("v_lshl_add_u32 v6, v3, 8, v6")
            a("v_lshrrev_b32 v4, 2, v0"); a("v_lshrrev_b32 v7, 4, v0"); a("v_xor_b32 v4, v4, v7"); a("v_and_b32 v4, 1, v4")
            a("v_lshlrev_b32 v3, 4, v3"); a("v_lshl_add_u32 v7, v4, 8, v3"); a("v_add_u32 v7, %d, v7" % U)
            a("s_lshl_b32 s46, s48, 2"); a("s_add_u32 s46, s46, s3"); a("s_xor_b32 s47, s49, 1")
            a("s_lshl_b32 s51, s46, 16"); a("s_lshl_b32 s54, s47, 12"); a("s_add_u32 s51, s51, s54"); a("s_add_u32 s51, s51, %d" % WS_O)
            a("s_lshl_b32 s52, s46, 10"); a("s_lshr_b32 s54, s47, 3"); a("s_lshl_b32 s54, s54, 9"); a("s_add_u32 s52, s52, s54")
            a("s_and_b32 s54, s47, 7"); a("s_lshl_b32 s54, s54, 2"); a("s_add_u32 s52, s52, s54"); a("s_add_u32 s52, s52, %d" % WS_F3)
            a("s_mov_b32 s53, 0x358637bd")
            for l in wphi_reads(BWP, 8, 0) + wphi_reads(BWP + 8, 8, 2048): a(l)
            if cfg.pfpat == "col":
                a("v_lshlrev_b32 v3, 11, v0"); a("s_lshr_b32 s46, s2, 6"); a("s_lshl_b32 s46, s46, 19"); a("s_lshl_b32 s47, s3, 17"); a("s_add_u32 s46, s46, s47")
            else:
                a("v_lshrrev_b32 v3, 3, v0"); a("v_and_b32 v4, 7, v0"); a("v_lshlrev_b32 v4, 7, v4"); a("v_lshl_add_u32 v3, v3, 11, v4")
                a("s_lshr_b32 s46, s2, 3"); a("s_lshl_b32 s46, s46, 16"); a("s_lshl_b32 s47, s3, 14"); a("s_add_u32 s46, s46, s47")
                a("s_bfe_u32 s47, s2, 0x30003"); a("s_lshl_b32 s47, s47, 7"); a("s_sub_u32 s46, s46, s47")
                if cfg.pfwo == "scalar":
                    a("s_add_u32 s24, s32, s46"); a("s_addc_u32 s25, s33, 0")
        if t == 14:
            if cfg.pfwo == "t14": pfw()
            if cfg.pfwo == "scalar": pfs(0, 12)
            for q in qorder[:cfg.q14]: dma_q(q)
        if t == 15:
            if cfg.pfwo == "t15": pfw()
            for q in qorder[cfg.q14:cfg.q14 + cfg.q15]: dma_q(q)
    a.bar(["Q%d" % q for q in range(cfg.early)])
    if not cfg.cnt: stamp(a, cfg, 6)
    if cfg.pfwo == "c1a": pfw()
    if cfg.pfwo == "scalar": pfs(12, 22)
    rest = [q for q in (10, 11, 12, 13, 0, 1, 2, 3, 4, 5, 6, 7, 8, 9) if q not in qorder[:cfg.q14 + cfg.q15]]
    late = rest[len(rest) - cfg.qlate:]
    for q in rest[:len(rest) - cfg.qlate]: dma_q(q)
    if cfg.pfwo == "c1": pfw()
    if cfg.pfwo == "scalar": pfs(22, 32)
    if cfg.early:
        qstream(a, [QUNIT[t] for t in range(cfg.early)], bx, BACC, BRING, WR, QUNIT[0] * U, {}, True)
    a.bar(["Q%d" % q for q in range(cfg.early + cfg.c2w)])
    stamp(a, cfg, 7)
    ev = {}
    def add(pos, f): ev.setdefault(pos, []).append(f)
    for i, q in enumerate(late): add(7 + 2 * i, lambda q=q: dma_q(q))
    assert cfg.c3b <= 8 * (min(late + [10]) - cfg.early)
    def c3a():
        a.bar(["Q%d" % q for q in range(16) if q not in late], lg0=False); stamp(a, cfg, 8)
        for q in (14, 15): dma_q(q)
        if cfg.pfwo == "c3a":
            a.raw("buffer_load_dword v1, v3, s[32:35], s46 offen"); a.vm.append((set(), "PF"))
    assert cfg.c3a <= 8 * cfg.c2w
    add(cfg.c3a, c3a)
    QPR = BCAP
    def c3b():
        a.bar(["Q14", "Q15"], lg0=False); stamp(a, cfg, 9)
    add(cfg.c3b, c3b)
    for i, p in enumerate(cfg.bst or []): add(p, lambda i=i: stamp(a, cfg, 1 + i))
    def c4():
        a.bar()
        for i in range(8): a(rd128(QPR + 4 * i, 5, 1024 * i))
    add(8 * (NB - cfg.early) + cfg.c4o, c4)
    qstream(a, [QUNIT[t] for t in range(cfg.early, NB)], lambda s, ks, rt: bx(s + cfg.early, ks, rt), BACC, BRING, WR, QUNIT[0] * U, ev, cfg.early == 0)
    stamp(a, cfg, 10)
    for ct in range(4):
        for rt in range(2):
            for h in range(2):
                r = 16 * rt + 4 * ct + 2 * h
                a("v_pk_add_f32 %s, %s, %s" % (v(BACC + r, 2), v(BACC + r, 2), v(QPR + r, 2)))
    PQ = 96; QA = BACC
    l0 = pack_pair(64, QA, QA + 16, QA + 4, QA + 20) + softmax(64, BWP, 160, 176, 224, 80, PQ)
    l1 = pack_pair(72, QA + 8, QA + 24, QA + 12, QA + 28) + softmax(72, BWP + 8, 192, 208, 240, 84, PQ + 16)
    for x, y in zip(l0, l1): a(x); a(y)
    a("v_mov_b32 v3, s44"); a("v_lshlrev_b32 v4, 7, v0")
    stamp(a, cfg, 11)
    a.bar()
    stamp(a, cfg, 12)
    KF, ZF, NUM, DEN, OP = 160, 192, 32, 64, 128
    for e in range(2):
        for i in range(4): a(rd128(ZF + 16 * e + 4 * i, 7, 128 * e + 32 * i))
        for i in range(4): a(rd128(KF + 16 * e + 4 * i, 9, 4096 * e + 1024 * i))
    for e in range(2):
        for i in range(4): a(mf16(DEN + 4 * e, ZF + 16 * e + 4 * i, PQ + 16 * e + 4 * i, "0" if i == 0 else None))
        for i in range(4): a(mf32(NUM + 16 * e, KF + 16 * e + 4 * i, PQ + 16 * e + 4 * i, "0" if i == 0 else None))
    for e in range(2):
        d = DEN + 4 * e; nu = NUM + 16 * e
        a("v_add_f32 v%d, s53, v%d" % (d, d)); a("v_rcp_f32 v%d, v%d" % (d, d))
        for m_ in range(2):
            for j in range(4 * m_, 4 * m_ + 4): a("v_pk_mul_f32 %s, %s, %s op_sel_hi:[1,0]" % (v(nu + 2 * j, 2), v(nu + 2 * j, 2), v(d, 2)))
            for j in range(4 * m_, 4 * m_ + 4): a(cvt(OP + 8 * e + j, nu + 2 * j, nu + 2 * j + 1))
            a("buffer_store_dwordx4 %s, v6, s[28:31], s51 offen offset:%d sc1" % (v(OP + 8 * e + 4 * m_, 4), 2048 * e + 512 * m_))
    if cfg.c5b: a.bar()
    stamp(a, cfg, 13)
    a("s_mov_b64 exec, 15")
    a.force(vm=0)
    a("buffer_atomic_swap v3, v4, s[28:31], s52 offen")
    a("s_mov_b64 exec, -1")
    stamp(a, cfg, 14)
    a("s_mov_b32 s47, 1")
    a("s_branch L_G2")
    a.lg = []; a.vm = []

    a.label("L_A")
    XA, WA, WPK = 10, 14, 24
    KVR, SEL, PHO, PHT, VWO = 32, 36, 4, 40, 18
    KA, VA, XT, WF, CAP = 48, 80, 112, 128, 160
    if cfg.prioA == "c3":
        a("s_and_b32 s46, s49, 7"); a("s_cmp_eq_u32 s46, 3"); a("s_cbranch_scc1 L_np"); a("s_setprio 1"); a.label("L_np")
    elif cfg.prioA == "fol":
        a("s_and_b32 s46, s49, 7"); a("s_cmp_eq_u32 s46, 3"); a("s_cbranch_scc1 L_np")
        a("s_add_u32 s46, s53, s54"); a("s_bitcmp1_b32 s46, 0"); a("s_cbranch_scc1 L_np"); a("s_setprio 1"); a.label("L_np")
    elif cfg.prioA: a("s_setprio %d" % cfg.prioA)
    a("s_sub_u32 s3, s3, 4")
    if cfg.hlp:
        assert cfg.rot == "r4b"
        a("s_and_b32 s61, s52, 1"); a("s_lshr_b32 s46, s54, 1"); a("s_or_b32 s61, s61, s46"); a("s_lshr_b32 s46, s3, 1"); a("s_or_b32 s61, s61, s46")
        a("s_add_u32 s46, s51, s52"); a("s_add_u32 s46, s46, s3"); a("s_and_b32 s46, s46, 1"); a("s_lshl_b32 s46, s46, 9")
        a("s_lshl_b32 s47, s54, 5"); a("s_add_u32 s46, s46, s47"); a("s_lshl_b32 s47, s53, 2"); a("s_add_u32 s46, s46, s47")
        a("v_lshrrev_b32 v1, 3, v0"); a("v_bfe_u32 v2, v0, 1, 2"); a("v_lshl_add_u32 v1, v1, 6, v2"); a("v_add_u32 v1, s46, v1")
        a("v_mul_u32_u24 v1, 6144, v1"); a("v_and_b32 v2, 1, v0"); a("v_lshl_add_u32 v47, v2, 11, v1")
        a("s_lshl_b32 s60, s52, 9"); a("s_add_u32 s60, s60, %d" % (2048 + 384))
        a.raw("s_waitcnt lgkmcnt(0)")
        a("s_mov_b32 s4, s6"); a("s_mov_b32 s5, s7"); a("s_mov_b32 s6, %d" % (1024 * 6144)); a("s_mov_b32 s7, 0x20000")
        if cfg.hlp == 1:
            a("s_cmp_lg_u32 s61, 0"); a("s_cbranch_scc1 L_h0")
        else:
            a("s_or_b32 s46, s61, s3"); a("s_cmp_lg_u32 s46, 0"); a("s_cbranch_scc1 L_h0")
        a.raw("buffer_load_dword v47, v47, s[4:7], s60 offen")
        a.label("L_h0")
        a("s_xor_b32 s46, s3, 1"); a("s_or_b32 s61, s61, s46")
    a("s_lshl_b32 s55, s3, 12"); a("s_lshl_b32 s56, s3, 11")
    a("s_and_b32 s52, s3, 1"); a("s_lshr_b32 s51, s3, 1")
    xlane(a, XA, 1, 2)
    a("s_xor_b32 s46, s55, 4096")
    a("v_add_u32 v%d, s46, v%d" % (XA + 2, XA)); a("v_add_u32 v%d, s46, v%d" % (XA + 3, XA + 1))
    a("v_add_u32 v%d, s55, v%d" % (XA, XA)); a("v_add_u32 v%d, s55, v%d" % (XA + 1, XA + 1))
    wlane(a, 16, 1, 2)
    a("s_lshl_b32 s46, s52, 6"); a("v_xor_b32 v%d, s46, v16" % WA)
    a("v_add_u32 v%d, %d, v%d" % (WA, 6 * U, WA)); a("v_xor_b32 v%d, 32, v%d" % (WA + 1, WA))
    wphi_lane(a, 17, 1, 2)
    a("s_and_b32 s46, s49, 1"); a("s_lshl_b32 s46, s46, 12")
    a("s_lshl_b32 s47, s52, 11"); a("s_add_u32 s46, s46, s47"); a("s_add_u32 s46, s46, %d" % (19 * U))
    a("v_add_u32 v17, s46, v17")
    a("v_lshlrev_b32 v9, 4, v0"); a("v_lshlrev_b32 v8, 2, v0")
    a("v_and_b32 v1, 15, v0"); a("v_lshlrev_b32 v1, 6, v1")
    a("v_lshrrev_b32 v2, 5, v0"); a("v_bfe_u32 v3, v0, 2, 2"); a("v_xor_b32 v2, v2, v3"); a("v_lshl_add_u32 v1, v2, 4, v1")
    a("v_lshrrev_b32 v2, 3, v0"); a("v_xor_b32 v2, v2, v0"); a("v_bfe_u32 v2, v2, 1, 1"); a("v_lshl_add_u32 v1, v2, 3, v1")
    a("s_lshl_b32 s54, s52, 13"); a("s_add_u32 s54, s54, %d" % (6 * U))
    a("s_add_u32 s46, s54, s56")
    a("v_add_u32 v20, s46, v1"); a("v_xor_b32 v21, 32, v20"); a("v_xor_b32 v22, 2048, v20"); a("v_xor_b32 v23, 2048, v21")
    a("s_mul_i32 s53, s52, %d" % (6 * U)); a("s_add_u32 s53, s53, %d" % (2 * U))
    a("s_add_u32 s46, s53, s56")
    ph_addr(a, PHO, 1, 2, "s46")
    a("v_and_b32 v1, 2, v0"); a("v_lshlrev_b32 v1, 2, v1")
    for g in range(4): a("v_xor_b32 v%d, v1, v%d" % (PHO + g, PHO + g))
    for g in range(4): a("v_xor_b32 v%d, 2048, v%d" % (PHT + g, PHO + g))
    a("v_lshrrev_b32 v1, 5, v0"); a("v_bfe_u32 v2, v0, 2, 2"); a("v_lshl_add_u32 v2, v1, 3, v2"); a("v_lshlrev_b32 v2, 6, v2")
    a("v_bfe_u32 v3, v0, 4, 1"); a("v_xor_b32 v3, v3, v1"); a("v_lshl_add_u32 v2, v3, 5, v2")
    a("v_and_b32 v3, 3, v0"); a("v_lshl_add_u32 v2, v3, 3, v2")
    a("v_and_b32 v3, 8, v0"); a("v_xor_b32 v2, v2, v3")
    a("v_xor_b32 v3, 16, v2"); a("v_add_u32 v3, 256, v3")
    a("s_lshl_b32 s46, s51, 13"); a("s_add_u32 s46, s46, s53")
    a("v_add_u32 v%d, s46, v2" % KVR); a("v_add_u32 v%d, s46, v3" % (KVR + 1)); a("v_add_u32 v%d, s54, v2" % (KVR + 2)); a("v_add_u32 v%d, s54, v3" % (KVR + 3))
    a("v_lshrrev_b32 v1, 2, v0"); a("v_lshrrev_b32 v2, 4, v0"); a("v_xor_b32 v1, v1, v2"); a("v_and_b32 v1, 1, v1")
    a("v_subrev_u32 v1, 1, v1"); a("v_and_b32 v%d, 0x3f803f80, v1" % SEL)
    for i in range(1, 4): a("v_mov_b32 v%d, v%d" % (SEL + i, SEL))
    a("v_and_b32 v1, 15, v0"); a("v_lshlrev_b32 v1, 4, v1"); a("v_lshl_add_u32 v44, v2, 14, v1"); a("v_lshl_add_u32 v46, v2, 12, v1")
    a("v_lshrrev_b32 v1, 4, v0"); a("v_lshlrev_b32 v1, 1, v1"); a("v_and_b32 v2, 7, v0"); a("v_xor_b32 v1, v1, v2"); a("v_lshlrev_b32 v1, 4, v1")
    a("v_lshrrev_b32 v2, 3, v0"); a("v_lshl_add_u32 v1, v2, 11, v1"); a("s_lshl_b32 s46, s3, 15")
    a("v_add_u32 v%d, s46, v1" % VWO); a("v_add_u32 v%d, %d, v%d" % (VWO + 1, 8 * 2048 - 1024, VWO))
    a("s_mul_i32 s46, s51, %d" % (6 * U)); a("s_lshl_b32 s47, s52, 13"); a("s_add_u32 s46, s46, s47"); a("s_add_u32 s46, s46, %d" % (2 * U))
    a("v_add_u32 v45, s46, v9")
    a("s_lshl_b32 s46, s52, 1"); a("s_add_u32 s46, s46, s51"); a("s_lshl_b32 s47, s49, 2"); a("s_add_u32 s46, s46, s47")
    a("s_lshl_b32 s57, s46, 16"); a("s_lshl_b32 s47, s48, 10"); a("s_add_u32 s57, s57, s47"); a("s_add_u32 s57, s57, %d" % WS_P1)
    a("s_lshl_b32 s58, s46, 9"); a("s_lshl_b32 s47, s48, 2"); a("s_add_u32 s58, s58, s47"); a("s_add_u32 s58, s58, %d" % WS_F1)
    for l in ["s_lshl_b32 s47, s49, 4", "s_add_u32 s47, s47, s48", "s_lshl_b32 s16, s47, 7", "s_add_u32 s16, s16, %d" % WS_F1,
              "s_lshr_b32 s17, s47, 2", "s_lshl_b32 s17, s17, 9", "s_and_b32 s46, s48, 3", "s_lshl_b32 s47, s46, 4", "s_add_u32 s17, s17, s47",
              "s_lshl_b32 s47, s3, 2", "s_add_u32 s17, s17, s47", "s_add_u32 s17, s17, %d" % WS_F2,
              "s_xor_b32 s20, s49, 1", "s_lshl_b32 s20, s20, 4", "s_add_u32 s20, s20, s47", "s_add_u32 s20, s20, s46",
              "s_lshl_b32 s20, s20, 7", "s_add_u32 s20, s20, %d" % WS_F2]: a(l)
    for l in ["s_lshl_b32 s47, s49, 4", "s_add_u32 s47, s47, s48", "s_lshl_b32 s46, s3, 8",
           "s_lshl_b32 s18, s47, 14", "s_add_u32 s18, s18, s46", "s_add_u32 s18, s18, %d" % WS_P1,
           "s_lshl_b32 s22, s47, 10", "s_add_u32 s22, s22, s46", "s_add_u32 s22, s22, %d" % WS_P2,
           "s_xor_b32 s24, s49, 1", "s_lshl_b32 s24, s24, 14", "s_add_u32 s24, s24, s55", "s_add_u32 s24, s24, %d" % WS_P2,
           "s_lshl_b32 s21, s3, 6", "s_add_u32 s21, s21, %d" % U]: a(l)
    a.raw("s_waitcnt lgkmcnt(0)")
    a.raw("s_load_dword s44, s[14:15], 0")
    srd_rest()
    if cfg.warm:
        a("s_lshl_b32 s46, s2, 9"); a("s_lshl_b32 s47, s3, 7"); a("s_add_u32 s46, s46, s47"); a("s_add_u32 s46, s46, %d" % WS_F1)
        a("v_mov_b32 v1, 0"); a("s_mov_b64 exec, 1")
        a.raw("buffer_atomic_or v1, v1, s[28:31], s46 offen")
        a("s_mov_b64 exec, -1")
    mktag()

    def xo(n, i):
        t, ks = n >> 1, n & 1
        if t >= NB: return CAP + 16 * (t - NB) + 8 * ks + 4 * i
        return CAP + 16 * (NA - 1) + 8 * ks + 4 * i
    def xf(n, i): return xo(n, i) if i < 2 else XT + 8 * (n & 1) + 4 * (i - 2)
    def wf(n, j): return WF + 16 * (n & 1) + 4 * j
    def reads(n):
        t, ks = n >> 1, n & 1; sl = slot(t)
        def rx(i): return rd128(xf(n, i), XA + 2 * (i >> 1) + ks, 2 * U * sl + 2048 * (i & 1))
        def rw(j): return [trd(wf(n, j) + 2 * tt, WA + (j & 1), 2 * U * sl + U * (j >> 1) + 4096 * ks + 512 * tt) for tt in range(2)]
        return [rx(0)] + rw(0) + [rx(1), rx(2), rx(3)] + rw(1) + rw(2) + rw(3)
    def accK(i, j): return KA + 8 * i + 4 * j
    def accV(i, j): return VA + 8 * i + 4 * j
    def mm(n):
        return [mf16(accK(i, j) if j < 2 else accV(i, j - 2), wf(n, j), xf(n, i), "0" if n == 0 else None) for j in range(4) for i in range(4)]
    extra = {6: wphi_reads(WPK, 17, 0)}
    if cfg.pfwo == "c3b":
        a("v_lshrrev_b32 v3, 3, v0"); a("v_and_b32 v1, 7, v0"); a("v_lshlrev_b32 v1, 7, v1"); a("v_lshl_add_u32 v47, v3, 11, v1")
        a("s_lshr_b32 s46, s2, 3"); a("s_lshl_b32 s46, s46, 16"); a("s_lshl_b32 s47, s3, 14"); a("s_add_u32 s46, s46, s47")
        a("s_bfe_u32 s47, s2, 0x30003"); a("s_lshl_b32 s47, s47, 7"); a("s_sub_u32 s60, s46, s47")
    a.bar()
    if not cfg.cnt: stamp(a, cfg, 1)
    for r in reads(0): a(r)
    TO, TW = WF, WF + 16
    for n in range(30):
        m = mm(n); r = reads(n + 1)
        if n % 2 == 0:
            r = r + extra.get(n, [])
            for i in range(16):
                a(m[i])
                if i < len(r): a(r[i])
        else:
            for i in range(16):
                if i == 4:
                    a.bar()
                    if cfg.hlp > 1 and n == cfg.hlp:
                        a("s_cmp_lg_u32 s61, 0"); a("s_cbranch_scc1 L_h1")
                        a.raw("buffer_load_dword v47, v47, s[4:7], s60 offen")
                        a.label("L_h1")
                    if n == 15 and not cfg.cnt: stamp(a, cfg, 2)
                    if n == 29 and not cfg.cnt: stamp(a, cfg, 3)
                a(m[i])
                if i >= 4: a(r[i - 4])
    po = pack_pair(TO, accK(2, 0), accK(3, 0), accK(2, 1), accK(3, 1))
    pw = pack_pair(TW, accK(0, 0), accK(1, 0), accK(0, 1), accK(1, 1))
    m30 = mm(30); m31 = mm(31); r = reads(31)
    for i in range(12): a(m30[i]); a(r[i])
    for x in [m31[2], m31[3], m31[6], m31[7], m31[0], m31[1], m31[4], m31[5]]: a(x)
    a.bar()
    if cfg.prio1 != cfg.prioA: a("s_setprio %d" % cfg.prio1)
    tail = m30[12:] + m31[8:]
    fill = po + pw
    k = 0
    for i, x in enumerate(tail):
        a(x)
        if i >= 1:
            for _ in range(2):
                if k < len(fill): a(fill[k]); k += 1
    while k < len(fill): a(fill[k]); k += 1
    stamp(a, cfg, 4)
    s0 = softmax(TO, WPK, KA, XT, WF, 10, WF)
    s1 = softmax(TW, WPK, KA + 16, VA + 16, WF + 16, (14, 2), WF + 16)
    vp = [cvt(VA + j, VA + 2 * j, VA + 2 * j + 1) for j in range(16)]
    vw = ["ds_write_b64 v%d, %s offset:%d" % (20 + j + 2 * (i >> 1), v(VA + 4 * i + 2 * j, 2), 1024 * (i & 1)) for i in range(4) for j in range(2)]
    def with_writes(L, OUT, AD):
        out = []
        for l in L:
            out.append(l)
            m_ = re.match(r"v_cvt_pk_bf16_f32 v(\d+),", l)
            if m_:
                k_ = int(m_.group(1)) - OUT
                if 0 <= k_ < 16 and k_ & 1:
                    out.append("ds_write_b64 v%d, %s offset:%d" % (AD + ((k_ & 7) >> 1), v(OUT + k_ - 1, 2), U * (k_ >> 3)))
        return out
    s0w = with_writes(s0[2:], WF, PHT); s1w = with_writes(s1[2:], WF + 16, PHO)
    vpw = []
    for i in range(4):
        for j in range(2):
            n_ = 2 * i + j
            vpw += [vp[2 * n_], vp[2 * n_ + 1], vw[n_]]
    for l in s0[:2] + s1[:2] + vpw[:12]: a(l)
    lead = vpw[12:] + [None] * max(0, cfg.stag - 12)
    y = lead + s1w
    for i in range(max(len(s0w), len(y))):
        if cfg.smst and i in cfg.smst: stamp(a, cfg, 1 + cfg.smst.index(i))
        if i < len(s0w): a(s0w[i])
        if i < len(y) and y[i]: a(y[i])
    stamp(a, cfg, 5)
    if cfg.prio2 != cfg.prio1: a("s_setprio %d" % cfg.prio2)
    a.bar()
    stamp(a, cfg, 6)
    FP, FV, KV, ZZ, KP = 48, 80, 128, 144, 112
    def kvr(ks):
        return [trd(FP + 4 * ks, KVR, 1024 * ks), trd(FP + 4 * ks + 2, KVR + 1, 1024 * ks), trd(FV + 4 * ks, KVR + 2, 1024 * ks), trd(FV + 4 * ks + 2, KVR + 3, 1024 * ks)]
    for ks in range(4):
        for l in kvr(ks): a(l)
    for g in range(4): a("v_mov_b32 v%d, s44" % (KP + 4 * g + 3))
    for g in range(1, 4): a("v_mov_b32 v%d, 0" % (KP + 4 * g + 2))
    a("v_lshlrev_b32 v13, 7, v0")
    a("v_mov_b32 v14, v16")
    for i in range(1, 4): a("v_xor_b32 v%d, %d, v14" % (14 + i, 32 * i))
    for ks in range(8):
        a(mf32(KV, FP + 4 * ks, FV + 4 * ks, "0" if ks == 0 else None))
        if ks + 4 < 8:
            for l in kvr(ks + 4): a(l)
    zl = [mf16(ZZ, SEL, FP + 4 * ks, "0" if ks == 0 else None) for ks in range(8)]
    for l in zl[:3]: a(l)
    for g in (3, 2, 1, 0):
        if g: a(zl[6 - g])
        else: a(zl[6]); a(zl[7])
        for j in range(2): a(cvt(KP + 4 * g + j, KV + 4 * g + 2 * j, KV + 4 * g + 2 * j + 1))
        if g == 0: a(cvt(KP + 2, ZZ, ZZ))
        a("buffer_store_dwordx4 %s, v44, s[28:31], s57 offen offset:%d sc1" % (v(KP + 4 * g, 4), 256 * g))
    a("s_mov_b64 exec, 15")
    a("buffer_atomic_swap v%d, v13, s[28:31], s58 offen" % (KP + 3))
    a("s_mov_b64 exec, -1")
    stamp(a, cfg, 7)
    if cfg.prio3 != cfg.prio2: a("s_setprio %d" % cfg.prio3)
    a.bar()
    QAA, QR = 48, 80
    fl = ["v_and_b32 v1, 1, v0", "v_lshlrev_b32 v1, 4, v1", "v_mov_b32 v2, 0x3f80",
          "v_lshlrev_b32 v1, v1, v2", "v_bfe_u32 v2, v0, 1, 2", "v_mov_b32 v135, s44"]
    for j in range(4):
        fl += ["v_cmp_eq_u32 vcc, %d, v2" % j, "v_cndmask_b32 v%d, 0, v1, vcc" % (SEL + j)]
    fl += ["v_mov_b32 v2, 0",
           "v_and_b32 v3, 15, v0", "v_lshrrev_b32 v4, 5, v0", "v_bfe_u32 v5, v0, 4, 1",
           "v_lshlrev_b32 v3, 4, v3", "v_lshl_add_u32 v3, v4, 10, v3", "v_lshl_add_u32 v3, v5, 3, v3", "v_add_u32 v20, s56, v3",
           "v_and_b32 v3, 3, v0", "v_bfe_u32 v4, v0, 2, 1", "v_and_b32 v5, 8, v0", "v_lshrrev_b32 v6, 4, v0",
           "v_lshl_add_u32 v3, v3, 1, v5", "v_lshl_add_u32 v3, v4, 4, v3", "v_lshl_add_u32 v3, v6, 9, v3", "v_add_u32 v21, s21, v3"]
    evA = {}
    for i, l in enumerate(fl): evA.setdefault(7 + i * 2 // 3, []).append(lambda l=l: a(l))
    def dma_wo(j):
        a("s_add_u32 m0, s56, %d" % ((4 + j) * U)); a("s_mov_b32 s59, %d" % (j * 64 * 2048))
        for i in range(2):
            a.wait(vm=cfg.pace_o)
            a("buffer_load_dwordx4 v%d, s[32:35], s59 offen offset:%d lds" % (VWO + i, 1024 * i), tag="WO")
    nfree = (cfg.c3b - 8) // 8 + cfg.early
    wof = [8, 9, 10, 11, 12, 13, 14, 15][:nfree]
    assert cfg.wo0 <= len(wof)
    woa = wof[:cfg.wo0]
    woa += [j for j in [0, 8, 1, 9, 2, 10, 3, 11, 12, 13, 6, 14, 7, 15] if j not in woa]
    wo3 = [4, 5]
    G = 136
    def p1loads():
        for i in range(4): a.raw("buffer_load_dwordx4 %s, v46, s[28:31], s18 offen offset:%d sc1" % (v(G + 4 * i, 4), 1024 * i))
    def tagcheck():
        a.raw("s_waitcnt vmcnt(0)"); a.vm = []
        a.raw("v_xor_b32 v3, s44, v%d" % (G + 3))
        for g in range(1, 4): a.raw("v_bitop3_b32 v3, v3, v%d, v135 bitop3:0xf6" % (G + 4 * g + 3))
        a.raw("v_cmp_ne_u32 vcc, 0, v3")
    def poll_issue(sreg, mask):
        a.raw("s_mov_b64 exec, 0x%x" % mask); a.raw("v_mov_b32 v12, 0")
        a.raw("buffer_atomic_or v12, v8, s[28:31], %s offen sc0" % sreg)
        a.raw("s_mov_b64 exec, -1")
    def poll(name, sreg, mask, issued):
        a.raw("s_mov_b32 s45, 0"); a.raw("s_mov_b64 exec, 0x%x" % mask)
        if issued: a.raw("s_branch %s_c" % name)
        a.label(name)
        a.raw("v_mov_b32 v12, 0")
        a.raw("buffer_atomic_or v12, v8, s[28:31], %s offen sc0" % sreg)
        if issued: a.label(name + "_c")
        a.raw("s_waitcnt vmcnt(0)"); a.vm = []
        a.raw("v_cmp_ne_u32 vcc, s44, v12")
        spin_tail(a, name)
        a.raw("s_mov_b64 exec, -1")
    def x0():
        stamp(a, cfg, 8)
        poll("L_f1", "s16", 0xffff, True)
        count(2)
        if cfg.cnt: stamp(a, cfg, 4)
        p1loads()
    def x1():
        a.raw("s_mov_b32 s45, 0"); a.raw("s_branch L_p1c")
        a.label("L_p1")
        p1loads()
        a.label("L_p1c")
        tagcheck()
        spin_tail(a, "L_p1")
        stamp(a, cfg, 9)
        for i in range(4): a(mf16(128, SEL, G + 4 * i, "0" if i == 0 else None))
        a(cvt(132, 128, 129)); a(cvt(133, 130, 131))
        a("v_permlane16_swap_b32 v132, v134")
        a("s_mov_b64 exec, 0xffff")
        a("buffer_store_dwordx4 v[132:135], v9, s[28:31], s22 offen sc1")
        a("s_mov_b64 exec, 15")
        a("buffer_atomic_swap v135, v13, s[28:31], s17 offen")
        a("s_mov_b64 exec, -1")
        stamp(a, cfg, 10)
        if cfg.pfwo == "c3b":
            a.raw("buffer_load_dword v1, v47, s[32:35], s60 offen"); a.vm.append((set(), "PF"))
        for j in woa[:cfg.wo0]: dma_wo(j)
    def c3bA():
        a.bar(lg0=False)
    assert 28 <= cfg.p1chk <= 54 and cfg.f1pos <= cfg.p1pos <= cfg.p1chk and cfg.c3bA <= 32 and cfg.c3bA < cfg.p1chk
    for i, p in enumerate(cfg.ast or []): evA.setdefault(p, []).append(lambda i=i: stamp(a, cfg, 1 + i))
    evA.setdefault(cfg.f1pos, []).append(lambda: poll_issue("s16", 0xffff))
    evA.setdefault(cfg.p1pos, []).append(x0)
    evA.setdefault(cfg.p1chk, []).append(x1)
    evA.setdefault(cfg.c3bA, []).append(c3bA)
    qstream(a, [QUNIT[t] for t in range(NB, 16)], lambda s, ks, rt: CAP + 16 * s + 8 * ks + 4 * rt, QAA, QR, 14, 0, evA, True)
    for i in (0, 4, 1, 5, 2, 6, 3, 7): a("ds_write_b128 v45, %s offset:%d" % (v(QAA + 4 * i, 4), 1024 * i))
    stamp(a, cfg, 11)
    poll_issue("s20", 0xffff)
    a.bar()
    w1 = cfg.wo0 + cfg.wo1
    for j in woa[cfg.wo0:w1]: dma_wo(j)
    a("ds_write_b32 v8, v2 offset:%d" % (U + 256))
    stamp(a, cfg, 12)
    poll("L_f2a", "s20", 0xffff, True)
    count(1)
    if cfg.cnt: stamp(a, cfg, 5)
    spin_head(a, "L_p2")
    for g in range(4): a.raw("buffer_load_dwordx4 %s, v9, s[28:31], s24 offen offset:%d sc1" % (v(G + 4 * g, 4), 1024 * g))
    tagcheck()
    spin_tail(a, "L_p2")
    stamp(a, cfg, 13)
    for g in range(4):
        a("ds_write_b64 v20, %s offset:%d" % (v(G + 4 * g, 2), g * 256))
        if g < 2: a("ds_write_b16 v21, v%d offset:%d" % (G + 4 * g + 2, g * 32))
    if cfg.c5b:
        for j in woa[w1:]: dma_wo(j)
    stamp(a, cfg, 14)
    a.bar()
    if cfg.c5b: a.bar()
    else:
        for j in woa[w1:]: dma_wo(j)
    for j in wo3: dma_wo(j)
    a("s_mov_b32 s47, 0")
    if cfg.prio3: a("s_setprio 0")
    a.force(vm=0)

    a.label("L_G2")
    a.lg = []; a.vm = []
    stamp(a, cfg, 15)
    rb2("s48", "s46")
    a("s_lshl_b32 s46, s48, 2"); a("s_add_u32 s46, s46, s3")
    a("s_lshl_b32 s52, s46, 10"); a("s_lshl_b32 s51, s47, 9"); a("s_add_u32 s52, s52, s51")
    a("s_bfe_u32 s51, s2, 0x20003"); a("s_lshl_b32 s51, s51, 7"); a("s_add_u32 s52, s52, s51"); a("s_add_u32 s52, s52, %d" % WS_F3)
    a("s_lshl_b32 s53, s46, 16"); a("s_lshl_b32 s51, s47, 15"); a("s_add_u32 s53, s53, s51"); a("s_add_u32 s53, s53, %d" % WS_O)
    a("v_lshlrev_b32 v8, 2, v0")
    a("s_lshl_b32 s51, s47, 10"); a("v_add_u32 v10, s51, v9"); a("v_xor_b32 v11, 1024, v10")
    a("v_lshrrev_b32 v1, 5, v0"); a("v_bfe_u32 v2, v0, 2, 3"); a("v_lshl_add_u32 v1, v1, 4, v2"); a("v_lshlrev_b32 v1, 7, v1")
    a("v_bfe_u32 v2, v0, 3, 2"); a("v_lshl_add_u32 v1, v2, 5, v1"); a("v_and_b32 v2, 3, v0"); a("v_lshl_add_u32 v1, v2, 3, v1")
    a("s_lshl_b32 s51, s47, 16"); a("s_add_u32 s51, s51, %d" % (4 * U)); a("v_add_u32 v14, s51, v1")
    for i in range(1, 4): a("v_xor_b32 v%d, %d, v14" % (14 + i, 32 * i))
    poll_issue("s52", 0xff)
    a.raw("s_barrier")
    stamp(a, cfg, 16)
    OF, ACC, RING = 128, 48, 80
    D = 7
    def rdf(f, t):
        if f < 64:
            n, ct = f >> 2, f & 3
            a(trd(RING + 4 * (f % 8) + 2 * t, 14 + ct, n * 4096 + t * 1024))
    for f in range(D): rdf(f, 0); rdf(f, 1)
    a("s_lshl_b32 s51, s3, 1"); a("s_add_u32 s51, s51, s47"); a("s_lshl_b32 s54, s51, 12")
    a("v_add_u32 v18, s54, v9"); a("v_xor_b32 v19, 4096, v18")
    a("s_lshl_b32 s54, s48, 18"); a("s_lshl_b32 s51, s51, 15"); a("s_add_u32 s54, s54, s51")
    cb128("s51", "s46"); a("s_add_u32 s54, s54, s51")
    a("v_and_b32 v1, 15, v0"); a("v_lshlrev_b32 v20, 11, v1"); a("v_bfe_u32 v1, v0, 4, 1"); a("v_lshl_add_u32 v20, v1, 5, v20")
    a("v_lshrrev_b32 v1, 5, v0"); a("v_lshl_add_u32 v20, v1, 4, v20")
    poll("L_f3", "s52", 0xff, True)
    stamp(a, cfg, 17)
    count(3)
    def old(n, i):
        if n < 16:
            a("buffer_load_dwordx4 %s, v%d, s[28:31], s53 offen offset:%d sc1" % (v(OF + 8 * n + 4 * i, 4), 10 + i, 2048 * (n & 1)))
            if i == 0 and n & 1 and n < 15: a("s_add_u32 s53, s53, 4096")
    for n in range(cfg.g2_pre): old(n, 1); old(n, 0)
    for f in range(64):
        n, ct = f >> 2, f & 3
        for i in (1, 0):
            a(mf16(ACC + 16 * i + 4 * ct, RING + 4 * (f % 8), OF + 8 * n + 4 * i, "0" if n == 0 else None))
            rdf(f + D, 1 - i)
        if ct == 0: old(n + cfg.g2_pre, 1)
        if ct == 2: old(n + cfg.g2_pre, 0)
    stamp(a, cfg, 18)
    for ct in range(4): a("ds_write_b128 v18, %s offset:%d" % (v(ACC + 16 + 4 * ct, 4), 1024 * ct))
    a.bar()
    for ct in range(4): a(rd128(RING + 4 * ct, 19, 1024 * ct))
    for j in range(2):
        for ct in (2 * j, 2 * j + 1):
            for h in range(2): a("v_pk_add_f32 %s, %s, %s" % (v(ACC + 4 * ct + 2 * h, 2), v(ACC + 4 * ct + 2 * h, 2), v(RING + 4 * ct + 2 * h, 2)))
        o = 112 + 4 * j
        for k in range(4): a(cvt(o + k, ACC + 8 * j + 2 * k, ACC + 8 * j + 2 * k + 1))
        a("v_permlane16_swap_b32 v%d, v%d" % (o, o + 2)); a("v_permlane16_swap_b32 v%d, v%d" % (o + 1, o + 3))
        a("buffer_store_dwordx4 %s, v20, s[36:39], s54 offen offset:%d %s" % (v(o, 4), 64 * j, cfg.outsc))
    a("s_or_b32 s46, s2, s3"); a("s_or_b32 s46, s46, s47")
    a("s_cmp_lg_u32 s46, 0"); a("s_cbranch_scc1 L_noep")
    a("v_mov_b32 v1, s44"); a("v_mov_b32 v2, 0"); a("s_mov_b64 exec, 1")
    a("buffer_store_dword v1, v2, s[28:31], 0 offen sc1")
    a("s_mov_b64 exec, -1")
    a.label("L_noep")
    if cfg.amp:
        idx, sh, wg = cfg.amp
        a.raw("s_waitcnt vmcnt(0)")
        stamp(a, cfg, 19)
        a.raw("s_waitcnt lgkmcnt(0)")
        a("s_or_b32 s46, s3, s47"); a("s_cmp_lg_u32 s46, 0"); a("s_cbranch_scc1 L_end")
        a("s_cmp_lg_u32 s2, %d" % wg); a("s_cbranch_scc1 L_end")
        a("s_sub_u32 s46, s%d, s%d" % (ST0 + 2 * idx, ST0)); a("s_lshl_b32 s46, s46, %d" % sh)
        a("s_min_u32 s46, s46, 40000"); a("s_mov_b32 s45, 0")
        a.label("L_amp")
        a.raw("s_memrealtime s[50:51]"); a.raw("s_waitcnt lgkmcnt(0)")
        a("s_sub_u32 s50, s50, s%d" % (ST0 + 38)); a("s_cmp_ge_u32 s50, s46"); a("s_cbranch_scc1 L_end")
        a("s_add_u32 s45, s45, 1"); a("s_cmp_lt_u32 s45, 100000"); a("s_cbranch_scc1 L_amp")
    elif cfg.stamps:
        a.raw("s_waitcnt vmcnt(0)")
        stamp(a, cfg, 19)
        a.raw("s_waitcnt lgkmcnt(0)")
        a("s_cmp_lg_u32 s3, 0"); a("s_cbranch_scc1 L_end")
        a("s_mul_i32 s60, s2, %d" % (NST * 8)); a("s_lshl_b32 s61, s47, 16"); a("s_add_u32 s60, s60, s61"); a("s_add_u32 s60, s60, %d" % WS_ST)
        a("v_mov_b32 v2, s60"); a("s_mov_b64 exec, 1")
        for i in range(NST):
            a("v_mov_b32 v4, s%d" % (ST0 + 2 * i)); a("v_mov_b32 v5, s%d" % (ST0 + 1 + 2 * i))
            a.raw("buffer_store_dwordx2 v[4:5], v2, s[28:31], 0 offen offset:%d" % (8 * i)); a.raw("s_waitcnt vmcnt(0)")
    a.label("L_end")
    a.raw("s_endpgm")
    return a

def build(cfg, path):
    a = gen(cfg)
    lines = hazard.fix(a.lines, verbose=False)
    for p in hazard.check_backedges(lines): print("BACKEDGE HAZARD:", p)
    out = HEADER + "; @launch grid=(256,1,1) block=(512,1,1) lds=163840\n"
    out += '.amdgcn_target "amdgcn-amd-amdhsa--gfx950"\n.text\n' + "\n".join(lines) + "\n"
    out += '.section .rodata,"a"\n.p2align 6\n' + kd(NAME, 256, 102 if cfg.stamps else 64, 256)
    open(path, "w").write(out)

def mk(path, **kw):
    c = Cfg()
    for k, x in kw.items():
        assert hasattr(c, k), k
        setattr(c, k, x)
    build(c, path)

if __name__ == "__main__":
    mk("v7.s")
    B = dict(stamps=True)
    mk("v7a_st.s", **B)
    mk("v7b_st.s", pace_q=7, pace_p=2, **B)
    mk("v7c_st.s", pace_q=11, pace_p=4, **B)
    mk("v7d_st.s", pace_q=7, pace_p=2, pace_m=7, **B)
    mk("v7e_st.s", pace_q=7, pace_p=2, pace_m=10, **B)
    mk("v7f_st.s", pace_q=5, pace_p=2, pace_m=12, **B)
```

```python
import sys, re
from asmlib import *
import hazard
from gen3 import (E, mf16, mf32, trd, rd128, cvt, pack_pair, softmax, ph_addr, wlane, xlane, wphi_lane,
                  wphi_reads, spin_head, spin_tail, stamp, NAME, LOG2E, TAGC, NST, ST0, U, WS_ST, SPIN)

WS_P2  = 0x40000
WS_F1  = 0x80000
WS_F2  = 0x88000
WS_F3  = 0x90000
WS_P1  = 0x400000
WS_O   = 0x800000
TMASK = 0xBFFFBFFF

class Cfg:
    stamps = False
    cnt = False
    pfwo = 'c1'
    smst = None
    pace_m = None
    pace_t0 = 2
    pace_q = None
    pace_p = None
    pace_o = None
    warm = True
    f1pos = 24
    hlp = 1
    hpx = 3
    bst = None
    ast = None
    pfpat = 'row'
    prest = -1
    amp = None
    scramble = False
    outsc = "sc0 sc1"
    rot = "r4b"
    prioA = 0
    prio1 = 1
    prio2 = 1
    prio3 = 1
    early = 0
    c2w = 4
    c3a = 24
    g2_pre = 3
    stag = 40
    wo1 = 0
    c5b = True
    p1pos = 31
    touch = False
    q14 = 4
    q15 = 2
    qlate = 0
    c3bA = 30
    c3b = 44
    c4o = 3
    p1chk = 40
    wo0 = 4
    kx = False
    g2dyn = True
    rp = 0
    xp = ''
    g2rot = True
    osc = 'sc1'
    g2st = False

def slot(t): return (t + 2) % 3

def qstream(a, units, xreg, ACC, RING, WR, base, events, first_c):
    D = 7
    frs = [(s, ks, ct) for s in range(len(units)) for ks in range(2) for ct in range(4)]
    st = {"base": base}
    def read(f, t):
        if t == 0:
            for ev in events.get(f, []): ev()
        if f >= len(frs): return
        s, ks, ct = frs[f]
        off = units[s] * U - st["base"]
        if off < 0 or off + U > 65536:
            nb = units[s] * U
            d = nb - st["base"]
            for i in range(4):
                a(("v_add_u32 v%d, %d, v%d" % (WR + i, d, WR + i)) if d > 0 else ("v_subrev_u32 v%d, %d, v%d" % (WR + i, -d, WR + i)))
            st["base"] = nb; off = 0
        a(trd(RING + 4 * (f % 8) + 2 * t, WR + ct, off + ks * 4096 + t * 512))
    for f in range(D): read(f, 0); read(f, 1)
    for f, (s, ks, ct) in enumerate(frs):
        for rt in range(2):
            a(mf16(ACC + 16 * rt + 4 * ct, RING + 4 * (f % 8), xreg(s, ks, rt), "0" if (first_c and f < 4) else None))
            read(f + D, rt)

def gen(cfg):
    a = E()
    NB = 10; NA = 6
    kernel_begin(a, NAME)
    a("s_cmp_ge_u32 s2, 256"); a("s_cbranch_scc1 L_end")
    a("s_load_dwordx8 s[4:11], s[0:1], 0")
    a("s_load_dwordx2 s[12:13], s[0:1], 32")
    a("s_load_dwordx2 s[14:15], s[0:1], 48")
    stamp(a, cfg, 0)
    if cfg.scramble:
        a("s_lshr_b32 s46, s2, 3"); a("s_lshr_b32 s47, s2, 5"); a("s_xor_b32 s46, s46, s47"); a("s_and_b32 s46, s46, 7"); a("s_xor_b32 s2, s2, s46")
    a("v_lshrrev_b32 v1, 6, v0"); a("v_and_b32 v0, 63, v0")
    a("s_and_b32 s51, s2, 1"); a("v_readfirstlane_b32 s3, v1")
    a("s_bfe_u32 s52, s2, 0x20001")
    a("s_bfe_u32 s53, s2, 0x30003")
    a("s_lshr_b32 s54, s2, 6")
    if cfg.hpx: a("s_xor_b32 s54, s54, %d" % cfg.hpx)
    a("s_lshl_b32 s48, s51, 3"); a("s_add_u32 s48, s48, s53")
    a("s_lshl_b32 s49, s52, 2"); a("s_add_u32 s49, s49, s54")
    a("s_mov_b32 s19, 0x20000"); a("s_mov_b32 s23, 0x20000")
    a("s_cmp_ge_u32 s3, 4"); a("s_cbranch_scc1 L_A")

    def cb128(d, t):
        a("s_bfe_u32 %s, s2, 0x30003" % d); a("s_bfe_u32 %s, s2, 0x10002" % t); a("s_lshl_b32 %s, %s, 3" % (t, t))
        a("s_add_u32 %s, %s, %s" % (d, d, t)); a("s_lshl_b32 %s, %s, 7" % (d, d))
    def rb2(d, t):
        a("s_and_b32 %s, s2, 3" % d); a("s_lshl_b32 %s, %s, 2" % (d, d)); a("s_lshr_b32 %s, s2, 6" % t); a("s_add_u32 %s, %s, %s" % (d, d, t))
    def srd_rest():
        a("s_mov_b32 s31, 0x20000"); a("s_mov_b32 s35, 0x20000"); a("s_mov_b32 s39, 0x20000")
        a("s_mov_b32 s28, s14"); a("s_mov_b32 s29, s15"); a("s_mov_b32 s30, 0x10000000")
        cb128("s46", "s47")
        a("s_add_u32 s32, s10, s46"); a("s_addc_u32 s33, s11, 0"); a("s_sub_u32 s34, %d, s46" % (1024 * 2048))
        a("s_mov_b32 s36, s12"); a("s_mov_b32 s37, s13"); a("s_mov_b32 s38, %d" % (2048 * 2048))
        a("s_mov_b32 s40, 0x%x" % LOG2E); a("s_mov_b32 s41, 0x%x" % LOG2E)
        a("s_mov_b32 s42, 0x%x" % (LOG2E | 0x80000000)); a("s_mov_b32 s43, 0x%x" % (LOG2E | 0x80000000))
    def mktag():
        a.raw("s_waitcnt lgkmcnt(0)")
        a("s_add_u32 s44, s44, 0x%x" % TAGC); a("s_and_b32 s44, s44, 0x%x" % TMASK)
    def count(idx):
        if cfg.cnt: a.raw("s_mov_b32 s%d, s45" % (ST0 + 2 * idx)); a.raw("s_mov_b32 s%d, 0" % (ST0 + 2 * idx + 1))

    QUNIT = {0: 12, 1: 13, 2: 14, 3: 15, 4: 16, 5: 17, 6: 18, 7: 19, 8: 10, 9: 11, 10: 0, 11: 1, 12: 4, 13: 5, 14: 6, 15: 7}

    XR, WR, VQ, VX, VW, BWP = 10, 10, 14, 16, 20, 16
    BACC, BRING, BCAP = 32, 64, 96
    if cfg.rot == "r4":
        a("s_add_u32 s50, s53, s54"); a("s_and_b32 s50, s50, 1"); a("s_lshl_b32 s50, s50, 1")
        a("s_add_u32 s46, s51, s52"); a("s_and_b32 s46, s46, 1"); a("s_add_u32 s50, s50, s46"); a("s_lshl_b32 s50, s50, 2")
    elif cfg.rot == "r4b":
        a("s_add_u32 s50, s51, s52"); a("s_and_b32 s50, s50, 1"); a("s_lshl_b32 s50, s50, 1")
        a("s_add_u32 s46, s53, s54"); a("s_and_b32 s46, s46, 1"); a("s_add_u32 s50, s50, s46"); a("s_lshl_b32 s50, s50, 2")
    elif isinstance(cfg.rot, tuple):
        first = True
        for c, r in zip(cfg.rot, ("s51", "s52", "s53", "s54")):
            if c:
                a("s_mul_i32 %s, %s, %d" % ("s50" if first else "s46", r, c))
                if not first: a("s_add_u32 s50, s50, s46")
                first = False
        a("s_and_b32 s50, s50, 15")
    else:
        a("s_mov_b32 s50, 0")
    a("s_lshl_b32 s55, s3, 12"); a("s_lshl_b32 s56, s3, 11")
    a("v_lshrrev_b32 v3, 3, v0"); a("v_and_b32 v4, 7, v0")
    a("v_lshrrev_b32 v5, 4, v0")
    a("v_xor_b32 v6, v5, v4"); a("v_lshlrev_b32 v6, 4, v6")
    a("s_lshl_b32 s46, s3, 16")
    a("v_lshl_add_u32 v6, v3, 11, v6"); a("v_add_u32 v%d, s46, v6" % VX)
    a("v_xor_b32 v6, 64, v%d" % VX)
    a("v_add_u32 v%d, %d, v6" % (VX + 1, 8 * 2048 - 1024))
    a("v_add_u32 v%d, %d, v%d" % (VX + 2, 16 * 2048 - 2048, VX))
    a("v_add_u32 v%d, %d, v6" % (VX + 3, 24 * 2048 - 3072))
    a("v_and_b32 v5, 1, v5"); a("v_lshlrev_b32 v5, 1, v5"); a("v_xor_b32 v5, v5, v4"); a("v_lshlrev_b32 v5, 4, v5")
    a("v_mul_u32_u24 v6, 6144, v3")
    a("s_mul_i32 s46, s3, %d" % (16 * 6144))
    a("s_and_b32 s47, s49, 1"); a("s_lshl_b32 s47, s47, 7")
    a("s_add_u32 s57, s46, s47"); a("s_add_u32 s57, s57, 2048")
    a("s_xor_b32 s47, s47, 128"); a("s_add_u32 s46, s46, s47")
    a("v_add3_u32 v%d, v5, v6, s57" % VW)
    a("v_add3_u32 v%d, v5, v6, s46" % VQ)
    a("v_xor_b32 v7, 64, v%d" % VW); a("v_add_u32 v%d, %d, v7" % (VW + 1, 8 * 6144 - 1024))
    a("v_add_u32 v%d, 2048, v%d" % (VW + 2, VW)); a("v_add_u32 v%d, 2048, v%d" % (VW + 3, VW + 1))
    a("s_lshl_b32 s46, s48, 18"); a("s_mov_b32 s18, %d" % (128 * 2048))
    a("s_lshr_b32 s47, s49, 1"); a("s_lshl_b32 s47, s47, 8")
    a("s_sub_u32 s22, %d, s47" % (1024 * 6144))
    a("s_lshl_b32 s58, s50, 7"); a("s_mul_i32 s59, s50, %d" % (64 * 6144))
    a("s_add_u32 m0, s55, %d" % (2 * U * slot(0)))
    if cfg.cnt: stamp(a, cfg, 4)
    a.raw("s_waitcnt lgkmcnt(0)")
    if cfg.cnt: stamp(a, cfg, 6)
    a("s_add_u32 s16, s4, s46"); a("s_addc_u32 s17, s5, 0")
    a("s_add_u32 s20, s6, s47"); a("s_addc_u32 s21, s7, 0")

    def kst(t):
        if cfg.kx: a("s_xor_b32 s57, s50, %d" % t)
        else: a("s_add_u32 s57, s50, %d" % t); a("s_and_b32 s57, s57, 15")
    def dma_stage(t, first=False):
        tag = "S%d" % t
        if not first:
            kst(t); a("s_add_u32 m0, s55, %d" % (2 * U * slot(t))); a("s_lshl_b32 s58, s57, 7"); a("s_mul_i32 s59, s57, %d" % (64 * 6144))
        pm = cfg.pace_m if t >= cfg.pace_t0 else None
        for j in range(4):
            a.wait(vm=pm)
            a("buffer_load_dwordx4 v%d, s[16:19], s58 offen offset:%d lds" % (VX + j, 1024 * j), tag=tag)
        for k in range(2):
            a("s_add_u32 m0, s56, %d" % ((6 + 2 * slot(t) + k) * U))
            for i in range(2):
                a.wait(vm=pm)
                a("buffer_load_dwordx4 v%d, s[20:23], s59 offen offset:%d lds" % (VW + 2 * k + i, 1024 * i), tag=tag)
    def dma_q(t):
        kst(t); a("s_add_u32 m0, s56, %d" % (QUNIT[t] * U)); a("s_mul_i32 s59, s57, %d" % (64 * 6144))
        for i in range(2):
            a.wait(vm=cfg.pace_q)
            a("buffer_load_dwordx4 v%d, s[20:23], s59 offen offset:%d lds" % (VQ + i, 1024 * i), tag="Q%d" % t)

    dma_stage(0, True)
    a.raw("s_load_dword s44, s[14:15], 0")
    dma_stage(1)
    stamp(a, cfg, 1)
    a("v_xor_b32 v7, 64, v%d" % VQ); a("v_add_u32 v%d, %d, v7" % (VQ + 1, 8 * 6144 - 1024))
    srd_rest()
    a("s_mov_b32 s10, 65536"); a("s_mov_b32 s11, 0x20000")
    xlane(a, XR, 1, 2)
    a("v_add_u32 v%d, s55, v%d" % (XR, XR)); a("v_add_u32 v%d, s55, v%d" % (XR + 1, XR + 1))
    a("v_lshlrev_b32 v9, 4, v0")
    wphi_lane(a, 8, 1, 2)
    a("s_and_b32 s46, s49, 1"); a("s_lshl_b32 s46, s46, 12"); a("s_xor_b32 s46, s46, 4096"); a("s_add_u32 s46, s46, %d" % (19 * U))
    a("v_add_u32 v8, s46, v8")
    mktag()
    def bx(s, ks, rt): return BCAP + 16 * s + 8 * ks + 4 * rt
    qorder = [0, 1, 2, 3, 10, 11, 4, 5, 6, 7]
    def pfw():
        a.wait(vm=cfg.pace_p)
        a.raw("buffer_load_dword v1, v3, s[32:35], s46 offen"); a.vm.append((set(), "PF"))
    def pfs(i0, i1):
        for i in range(i0, i1): a.raw("s_load_dwordx2 s[26:27], s[24:25], 0x%x" % ((i >> 2) * 2048 + (i & 3) * 256 + 124))
    for t in range(16):
        a.bar(["S%d" % t])
        if t == 0: stamp(a, cfg, 2)
        if t == 4 and not cfg.cnt: stamp(a, cfg, 3)
        if t == 8 and not cfg.cnt: stamp(a, cfg, 4)
        if t == 15: stamp(a, cfg, 5)
        if t < NB:
            for ks in range(2):
                for rt in range(2): a(rd128(bx(t, ks, rt), XR + ks, 2 * U * slot(t) + 2048 * rt))
        if t == 0:
            a("s_lshr_b32 s46, s49, 1"); a("s_lshl_b32 s46, s46, 13"); a("s_add_u32 s46, s46, s56")
            a("s_add_u32 m0, s56, %d" % (19 * U))
            for i in range(2): a("buffer_load_dwordx4 v9, s[8:11], s46 offen offset:%d lds" % (1024 * i), tag="WP")
        if t + 2 < 16: dma_stage(t + 2)
        if t == 13:
            wlane(a, WR, 3, 4)
            a("v_add_u32 v%d, %d, v%d" % (WR, QUNIT[0] * U, WR))
            for i in range(1, 4): a("v_xor_b32 v%d, %d, v%d" % (WR + i, 32 * i, WR))
            a("s_lshr_b32 s46, s3, 1"); a("s_mul_i32 s46, s46, %d" % (6 * U)); a("s_and_b32 s47, s3, 1"); a("s_lshl_b32 s47, s47, 13")
            a("s_add_u32 s46, s46, s47"); a("s_add_u32 s46, s46, %d" % (2 * U)); a("v_add_u32 v5, s46, v9")
            a("v_and_b32 v3, 15, v0"); a("v_lshlrev_b32 v6, 4, v3"); a("v_bfe_u32 v3, v0, 4, 1"); a("v_lshl_add_u32 v6, v3, 10, v6")
            a("v_lshrrev_b32 v3, 5, v0"); a("v_lshl_add_u32 v6, v3, 8, v6")
            a("v_lshrrev_b32 v4, 2, v0"); a("v_lshrrev_b32 v7, 4, v0"); a("v_xor_b32 v4, v4, v7"); a("v_and_b32 v4, 1, v4")
            a("v_lshlrev_b32 v3, 4, v3"); a("v_lshl_add_u32 v7, v4, 8, v3"); a("v_add_u32 v7, %d, v7" % U)
            a("s_lshl_b32 s46, s48, 2"); a("s_add_u32 s46, s46, s3"); a("s_xor_b32 s47, s49, 1")
            a("s_lshl_b32 s51, s46, 16"); a("s_lshl_b32 s54, s47, 12"); a("s_add_u32 s51, s51, s54"); a("s_add_u32 s51, s51, %d" % WS_O)
            a("s_lshl_b32 s52, s46, 10"); a("s_and_b32 s54, s47, 1"); a("s_lshl_b32 s54, s54, 9"); a("s_add_u32 s52, s52, s54")
            a("s_lshr_b32 s54, s47, 1"); a("s_lshl_b32 s54, s54, 2"); a("s_add_u32 s52, s52, s54"); a("s_add_u32 s52, s52, %d" % WS_F3)
            a("s_mov_b32 s53, 0x358637bd")
            for l in wphi_reads(BWP, 8, 0) + wphi_reads(BWP + 8, 8, 2048): a(l)
            if cfg.pfpat == "col":
                a("v_lshlrev_b32 v3, 11, v0"); a("s_lshr_b32 s46, s2, 6"); a("s_lshl_b32 s46, s46, 19"); a("s_lshl_b32 s47, s3, 17"); a("s_add_u32 s46, s46, s47")
            else:
                a("v_lshrrev_b32 v3, 3, v0"); a("v_and_b32 v4, 7, v0"); a("v_lshlrev_b32 v4, 7, v4"); a("v_lshl_add_u32 v3, v3, 11, v4")
                a("s_lshr_b32 s46, s2, 3"); a("s_lshl_b32 s46, s46, 16"); a("s_lshl_b32 s47, s3, 14"); a("s_add_u32 s46, s46, s47")
                a("s_bfe_u32 s47, s2, 0x30003"); a("s_lshl_b32 s47, s47, 7"); a("s_sub_u32 s46, s46, s47")
                if cfg.pfwo == "scalar":
                    a("s_add_u32 s24, s32, s46"); a("s_addc_u32 s25, s33, 0")
        if t == 14:
            if cfg.pfwo == "t14": pfw()
            if cfg.pfwo == "scalar": pfs(0, 12)
            for q in qorder[:cfg.q14]: dma_q(q)
        if t == 15:
            if cfg.pfwo == "t15": pfw()
            for q in qorder[cfg.q14:cfg.q14 + cfg.q15]: dma_q(q)
    a.bar(["Q%d" % q for q in range(cfg.early)])
    if not cfg.cnt: stamp(a, cfg, 6)
    if cfg.pfwo == "c1a": pfw()
    if cfg.pfwo == "scalar": pfs(12, 22)
    rest = [q for q in (10, 11, 12, 13, 0, 1, 2, 3, 4, 5, 6, 7, 8, 9) if q not in qorder[:cfg.q14 + cfg.q15]]
    late = rest[len(rest) - cfg.qlate:]
    for q in rest[:len(rest) - cfg.qlate]: dma_q(q)
    if cfg.pfwo == "c1": pfw()
    if cfg.pfwo == "scalar": pfs(22, 32)
    if cfg.early:
        qstream(a, [QUNIT[t] for t in range(cfg.early)], bx, BACC, BRING, WR, QUNIT[0] * U, {}, True)
    a.bar(["Q%d" % q for q in range(cfg.early + cfg.c2w)])
    stamp(a, cfg, 7)
    ev = {}
    def add(pos, f): ev.setdefault(pos, []).append(f)
    for i, q in enumerate(late): add(7 + 2 * i, lambda q=q: dma_q(q))
    assert cfg.c3b <= 8 * (min(late + [10]) - cfg.early)
    def c3a():
        a.bar(["Q%d" % q for q in range(16) if q not in late], lg0=False); stamp(a, cfg, 8)
        for q in (14, 15): dma_q(q)
        if cfg.pfwo == "c3a":
            a.raw("buffer_load_dword v1, v3, s[32:35], s46 offen"); a.vm.append((set(), "PF"))
    assert cfg.c3a <= 8 * cfg.c2w
    add(cfg.c3a, c3a)
    QPR = BCAP
    def c3b():
        a.bar(["Q14", "Q15"], lg0=False); stamp(a, cfg, 9)
    add(cfg.c3b, c3b)
    for i, p in enumerate(cfg.bst or []): add(p, lambda i=i: stamp(a, cfg, 1 + i))
    def c4():
        a.bar()
        for i in range(8): a(rd128(QPR + 4 * i, 5, 1024 * i))
    add(8 * (NB - cfg.early) + cfg.c4o, c4)
    qstream(a, [QUNIT[t] for t in range(cfg.early, NB)], lambda s, ks, rt: bx(s + cfg.early, ks, rt), BACC, BRING, WR, QUNIT[0] * U, ev, cfg.early == 0)
    stamp(a, cfg, 10)
    for ct in range(4):
        for rt in range(2):
            for h in range(2):
                r = 16 * rt + 4 * ct + 2 * h
                a("v_pk_add_f32 %s, %s, %s" % (v(BACC + r, 2), v(BACC + r, 2), v(QPR + r, 2)))
    PQ = 96; QA = BACC
    l0 = pack_pair(64, QA, QA + 16, QA + 4, QA + 20) + softmax(64, BWP, 160, 176, 224, 80, PQ)
    l1 = pack_pair(72, QA + 8, QA + 24, QA + 12, QA + 28) + softmax(72, BWP + 8, 192, 208, 240, 84, PQ + 16)
    for x, y in zip(l0, l1): a(x); a(y)
    a("v_mov_b32 v3, s44"); a("v_lshlrev_b32 v4, 7, v0")
    stamp(a, cfg, 11)
    a.bar()
    stamp(a, cfg, 12)
    KF, ZF, NUM, DEN, OP = 160, 192, 32, 64, 128
    for e in range(2):
        for i in range(4): a(rd128(ZF + 16 * e + 4 * i, 7, 128 * e + 32 * i))
        for i in range(4): a(rd128(KF + 16 * e + 4 * i, 9, 4096 * e + 1024 * i))
    for e in range(2):
        for i in range(4): a(mf16(DEN + 4 * e, ZF + 16 * e + 4 * i, PQ + 16 * e + 4 * i, "0" if i == 0 else None))
        for i in range(4): a(mf32(NUM + 16 * e, KF + 16 * e + 4 * i, PQ + 16 * e + 4 * i, "0" if i == 0 else None))
    for e in range(2):
        d = DEN + 4 * e; nu = NUM + 16 * e
        a("v_add_f32 v%d, s53, v%d" % (d, d)); a("v_rcp_f32 v%d, v%d" % (d, d))
        for m_ in range(2):
            for j in range(4 * m_, 4 * m_ + 4): a("v_pk_mul_f32 %s, %s, %s op_sel_hi:[1,0]" % (v(nu + 2 * j, 2), v(nu + 2 * j, 2), v(d, 2)))
            for j in range(4 * m_, 4 * m_ + 4): a(cvt(OP + 8 * e + j, nu + 2 * j, nu + 2 * j + 1))
            a("buffer_store_dwordx4 %s, v6, s[28:31], s51 offen offset:%d sc1" % (v(OP + 8 * e + 4 * m_, 4), 2048 * e + 512 * m_))
    a.bar()
    stamp(a, cfg, 13)
    a("s_mov_b32 s47, 1")
    a("s_branch L_G2")
    a.lg = []; a.vm = []

    a.label("L_A")
    XA, WA, WPK = 10, 14, 24
    KVR, SEL, PHO, PHT, VWO = 32, 36, 4, 40, 18
    KA, VA, XT, WF, CAP = 48, 80, 112, 128, 160
    if cfg.prioA == "c3":
        a("s_and_b32 s46, s49, 7"); a("s_cmp_eq_u32 s46, 3"); a("s_cbranch_scc1 L_np"); a("s_setprio 1"); a.label("L_np")
    elif cfg.prioA == "fol":
        a("s_and_b32 s46, s49, 7"); a("s_cmp_eq_u32 s46, 3"); a("s_cbranch_scc1 L_np")
        a("s_add_u32 s46, s53, s54"); a("s_bitcmp1_b32 s46, 0"); a("s_cbranch_scc1 L_np"); a("s_setprio 1"); a.label("L_np")
    elif cfg.prioA: a("s_setprio %d" % cfg.prioA)
    a("s_sub_u32 s3, s3, 4")
    if cfg.hlp:
        assert cfg.rot == "r4b"
        a("s_and_b32 s61, s52, 1"); a("s_lshr_b32 s46, s54, 1"); a("s_or_b32 s61, s61, s46"); a("s_lshr_b32 s46, s3, 1"); a("s_or_b32 s61, s61, s46")
        a("s_add_u32 s46, s51, s52"); a("s_add_u32 s46, s46, s3"); a("s_and_b32 s46, s46, 1"); a("s_lshl_b32 s46, s46, 9")
        a("s_lshl_b32 s47, s54, 5"); a("s_add_u32 s46, s46, s47"); a("s_lshl_b32 s47, s53, 2"); a("s_add_u32 s46, s46, s47")
        a("v_lshrrev_b32 v1, 3, v0"); a("v_bfe_u32 v2, v0, 1, 2"); a("v_lshl_add_u32 v1, v1, 6, v2"); a("v_add_u32 v1, s46, v1")
        a("v_mul_u32_u24 v1, 6144, v1"); a("v_and_b32 v2, 1, v0"); a("v_lshl_add_u32 v47, v2, 11, v1")
        a("s_lshl_b32 s60, s52, 9"); a("s_add_u32 s60, s60, %d" % (2048 + 384))
        a.raw("s_waitcnt lgkmcnt(0)")
        a("s_mov_b32 s4, s6"); a("s_mov_b32 s5, s7"); a("s_mov_b32 s6, %d" % (1024 * 6144)); a("s_mov_b32 s7, 0x20000")
        if cfg.hlp == 1:
            a("s_cmp_lg_u32 s61, 0"); a("s_cbranch_scc1 L_h0")
        else:
            a("s_or_b32 s46, s61, s3"); a("s_cmp_lg_u32 s46, 0"); a("s_cbranch_scc1 L_h0")
        a.raw("buffer_load_dword v47, v47, s[4:7], s60 offen")
        a.label("L_h0")
        a("s_xor_b32 s46, s3, 1"); a("s_or_b32 s61, s61, s46")
    a("s_lshl_b32 s55, s3, 12"); a("s_lshl_b32 s56, s3, 11")
    a("s_and_b32 s52, s3, 1"); a("s_lshr_b32 s51, s3, 1")
    xlane(a, XA, 1, 2)
    a("s_xor_b32 s46, s55, 4096")
    a("v_add_u32 v%d, s46, v%d" % (XA + 2, XA)); a("v_add_u32 v%d, s46, v%d" % (XA + 3, XA + 1))
    a("v_add_u32 v%d, s55, v%d" % (XA, XA)); a("v_add_u32 v%d, s55, v%d" % (XA + 1, XA + 1))
    wlane(a, 16, 1, 2)
    a("s_lshl_b32 s46, s52, 6"); a("v_xor_b32 v%d, s46, v16" % WA)
    a("v_add_u32 v%d, %d, v%d" % (WA, 6 * U, WA)); a("v_xor_b32 v%d, 32, v%d" % (WA + 1, WA))
    wphi_lane(a, 17, 1, 2)
    a("s_and_b32 s46, s49, 1"); a("s_lshl_b32 s46, s46, 12")
    a("s_lshl_b32 s47, s52, 11"); a("s_add_u32 s46, s46, s47"); a("s_add_u32 s46, s46, %d" % (19 * U))
    a("v_add_u32 v17, s46, v17")
    a("v_lshlrev_b32 v9, 4, v0"); a("v_lshlrev_b32 v8, 2, v0")
    a("v_and_b32 v1, 15, v0"); a("v_lshlrev_b32 v1, 6, v1")
    a("v_lshrrev_b32 v2, 5, v0"); a("v_bfe_u32 v3, v0, 2, 2"); a("v_xor_b32 v2, v2, v3"); a("v_lshl_add_u32 v1, v2, 4, v1")
    a("v_lshrrev_b32 v2, 3, v0"); a("v_xor_b32 v2, v2, v0"); a("v_bfe_u32 v2, v2, 1, 1"); a("v_lshl_add_u32 v1, v2, 3, v1")
    a("s_lshl_b32 s54, s52, 13"); a("s_add_u32 s54, s54, %d" % (6 * U))
    a("s_add_u32 s46, s54, s56")
    a("v_add_u32 v20, s46, v1"); a("v_xor_b32 v21, 32, v20"); a("v_xor_b32 v22, 2048, v20"); a("v_xor_b32 v23, 2048, v21")
    a("s_mul_i32 s53, s52, %d" % (6 * U)); a("s_add_u32 s53, s53, %d" % (2 * U))
    a("s_add_u32 s46, s53, s56")
    ph_addr(a, PHO, 1, 2, "s46")
    a("v_and_b32 v1, 2, v0"); a("v_lshlrev_b32 v1, 2, v1")
    for g in range(4): a("v_xor_b32 v%d, v1, v%d" % (PHO + g, PHO + g))
    for g in range(4): a("v_xor_b32 v%d, 2048, v%d" % (PHT + g, PHO + g))
    a("v_lshrrev_b32 v1, 5, v0"); a("v_bfe_u32 v2, v0, 2, 2"); a("v_lshl_add_u32 v2, v1, 3, v2"); a("v_lshlrev_b32 v2, 6, v2")
    a("v_bfe_u32 v3, v0, 4, 1"); a("v_xor_b32 v3, v3, v1"); a("v_lshl_add_u32 v2, v3, 5, v2")
    a("v_and_b32 v3, 3, v0"); a("v_lshl_add_u32 v2, v3, 3, v2")
    a("v_and_b32 v3, 8, v0"); a("v_xor_b32 v2, v2, v3")
    a("v_xor_b32 v3, 16, v2"); a("v_add_u32 v3, 256, v3")
    a("s_lshl_b32 s46, s51, 13"); a("s_add_u32 s46, s46, s53")
    a("v_add_u32 v%d, s46, v2" % KVR); a("v_add_u32 v%d, s46, v3" % (KVR + 1)); a("v_add_u32 v%d, s54, v2" % (KVR + 2)); a("v_add_u32 v%d, s54, v3" % (KVR + 3))
    a("v_lshrrev_b32 v1, 2, v0"); a("v_lshrrev_b32 v2, 4, v0"); a("v_xor_b32 v1, v1, v2"); a("v_and_b32 v1, 1, v1")
    a("v_subrev_u32 v1, 1, v1"); a("v_and_b32 v%d, 0x3f803f80, v1" % SEL)
    for i in range(1, 4): a("v_mov_b32 v%d, v%d" % (SEL + i, SEL))
    a("v_and_b32 v1, 15, v0"); a("v_lshlrev_b32 v1, 4, v1"); a("v_lshl_add_u32 v44, v2, 14, v1"); a("v_lshl_add_u32 v46, v2, 12, v1")
    a("v_lshrrev_b32 v1, 4, v0"); a("v_lshlrev_b32 v1, 1, v1"); a("v_and_b32 v2, 7, v0"); a("v_xor_b32 v1, v1, v2"); a("v_lshlrev_b32 v1, 4, v1")
    a("v_lshrrev_b32 v2, 3, v0"); a("v_lshl_add_u32 v1, v2, 11, v1"); a("s_lshl_b32 s46, s3, 15")
    a("v_add_u32 v%d, s46, v1" % VWO); a("v_add_u32 v%d, %d, v%d" % (VWO + 1, 8 * 2048 - 1024, VWO))
    a("s_mul_i32 s46, s51, %d" % (6 * U)); a("s_lshl_b32 s47, s52, 13"); a("s_add_u32 s46, s46, s47"); a("s_add_u32 s46, s46, %d" % (2 * U))
    a("v_add_u32 v45, s46, v9")
    a("s_lshl_b32 s46, s52, 1"); a("s_add_u32 s46, s46, s51"); a("s_lshl_b32 s47, s49, 2"); a("s_add_u32 s46, s46, s47")
    a("s_lshl_b32 s57, s46, 16"); a("s_lshl_b32 s47, s48, 10"); a("s_add_u32 s57, s57, s47"); a("s_add_u32 s57, s57, %d" % WS_P1)
    a("s_lshl_b32 s58, s46, 9"); a("s_lshl_b32 s47, s48, 2"); a("s_add_u32 s58, s58, s47"); a("s_add_u32 s58, s58, %d" % WS_F1)
    for l in ["s_lshl_b32 s47, s49, 4", "s_add_u32 s47, s47, s48", "s_lshl_b32 s16, s47, 7", "s_add_u32 s16, s16, %d" % WS_F1,
              "s_lshr_b32 s17, s47, 2", "s_lshl_b32 s17, s17, 9", "s_and_b32 s46, s48, 3", "s_lshl_b32 s47, s46, 4", "s_add_u32 s17, s17, s47",
              "s_lshl_b32 s47, s3, 2", "s_add_u32 s17, s17, s47", "s_add_u32 s17, s17, %d" % WS_F2,
              "s_xor_b32 s20, s49, 1", "s_lshl_b32 s20, s20, 4", "s_add_u32 s20, s20, s47", "s_add_u32 s20, s20, s46",
              "s_lshl_b32 s20, s20, 7", "s_add_u32 s20, s20, %d" % WS_F2]: a(l)
    for l in ["s_lshl_b32 s47, s49, 4", "s_add_u32 s47, s47, s48", "s_lshl_b32 s46, s3, 8",
           "s_lshl_b32 s18, s47, 14", "s_add_u32 s18, s18, s46", "s_add_u32 s18, s18, %d" % WS_P1,
           "s_lshl_b32 s22, s47, 10", "s_add_u32 s22, s22, s46", "s_add_u32 s22, s22, %d" % WS_P2,
           "s_xor_b32 s24, s49, 1", "s_lshl_b32 s24, s24, 14", "s_add_u32 s24, s24, s55", "s_add_u32 s24, s24, %d" % WS_P2,
           "s_lshl_b32 s21, s3, 6", "s_add_u32 s21, s21, %d" % U]: a(l)
    a.raw("s_waitcnt lgkmcnt(0)")
    a.raw("s_load_dword s44, s[14:15], 0")
    srd_rest()
    if cfg.warm:
        a("s_lshl_b32 s46, s2, 9"); a("s_lshl_b32 s47, s3, 7"); a("s_add_u32 s46, s46, s47"); a("s_add_u32 s46, s46, %d" % WS_F1)
        a("v_mov_b32 v1, 0"); a("s_mov_b64 exec, 1")
        a.raw("buffer_atomic_or v1, v1, s[28:31], s46 offen")
        a("s_mov_b64 exec, -1")
    mktag()

    def xo(n, i):
        t, ks = n >> 1, n & 1
        if t >= NB: return CAP + 16 * (t - NB) + 8 * ks + 4 * i
        return CAP + 16 * (NA - 1) + 8 * ks + 4 * i
    def xf(n, i): return xo(n, i) if i < 2 else XT + 8 * (n & 1) + 4 * (i - 2)
    def wf(n, j): return WF + 16 * (n & 1) + 4 * j
    def reads(n):
        t, ks = n >> 1, n & 1; sl = slot(t)
        def rx(i): return rd128(xf(n, i), XA + 2 * (i >> 1) + ks, 2 * U * sl + 2048 * (i & 1))
        def rw(j): return [trd(wf(n, j) + 2 * tt, WA + (j & 1), 2 * U * sl + U * (j >> 1) + 4096 * ks + 512 * tt) for tt in range(2)]
        return [rx(0)] + rw(0) + [rx(1), rx(2), rx(3)] + rw(1) + rw(2) + rw(3)
    def accK(i, j): return KA + 8 * i + 4 * j
    def accV(i, j): return VA + 8 * i + 4 * j
    def mm(n):
        return [mf16(accK(i, j) if j < 2 else accV(i, j - 2), wf(n, j), xf(n, i), "0" if n == 0 else None) for j in range(4) for i in range(4)]
    extra = {6: wphi_reads(WPK, 17, 0)}
    if cfg.pfwo == "c3b":
        a("v_lshrrev_b32 v3, 3, v0"); a("v_and_b32 v1, 7, v0"); a("v_lshlrev_b32 v1, 7, v1"); a("v_lshl_add_u32 v47, v3, 11, v1")
        a("s_lshr_b32 s46, s2, 3"); a("s_lshl_b32 s46, s46, 16"); a("s_lshl_b32 s47, s3, 14"); a("s_add_u32 s46, s46, s47")
        a("s_bfe_u32 s47, s2, 0x30003"); a("s_lshl_b32 s47, s47, 7"); a("s_sub_u32 s60, s46, s47")
    a.bar()
    if not cfg.cnt: stamp(a, cfg, 1)
    for r in reads(0): a(r)
    TO, TW = WF, WF + 16
    for n in range(30):
        m = mm(n); r = reads(n + 1)
        if n % 2 == 0:
            r = r + extra.get(n, [])
            for i in range(16):
                a(m[i])
                if i < len(r): a(r[i])
        else:
            for i in range(16):
                if i == 4:
                    a.bar()
                    if cfg.hlp > 1 and n == cfg.hlp:
                        a("s_cmp_lg_u32 s61, 0"); a("s_cbranch_scc1 L_h1")
                        a.raw("buffer_load_dword v47, v47, s[4:7], s60 offen")
                        a.label("L_h1")
                    if n == 15 and not cfg.cnt: stamp(a, cfg, 2)
                    if n == 29 and not cfg.cnt: stamp(a, cfg, 3)
                a(m[i])
                if i >= 4: a(r[i - 4])
    po = pack_pair(TO, accK(2, 0), accK(3, 0), accK(2, 1), accK(3, 1))
    pw = pack_pair(TW, accK(0, 0), accK(1, 0), accK(0, 1), accK(1, 1))
    m30 = mm(30); m31 = mm(31); r = reads(31)
    for i in range(12): a(m30[i]); a(r[i])
    for x in [m31[2], m31[3], m31[6], m31[7], m31[0], m31[1], m31[4], m31[5]]: a(x)
    a.bar()
    if cfg.prio1 != cfg.prioA: a("s_setprio %d" % cfg.prio1)
    tail = m30[12:] + m31[8:]
    fill = po + pw
    k = 0
    for i, x in enumerate(tail):
        a(x)
        if i >= 1:
            for _ in range(2):
                if k < len(fill): a(fill[k]); k += 1
    while k < len(fill): a(fill[k]); k += 1
    stamp(a, cfg, 4)
    s0 = softmax(TO, WPK, KA, XT, WF, 10, WF)
    s1 = softmax(TW, WPK, KA + 16, VA + 16, WF + 16, (14, 2), WF + 16)
    vp = [cvt(VA + j, VA + 2 * j, VA + 2 * j + 1) for j in range(16)]
    vw = ["ds_write_b64 v%d, %s offset:%d" % (20 + j + 2 * (i >> 1), v(VA + 4 * i + 2 * j, 2), 1024 * (i & 1)) for i in range(4) for j in range(2)]
    def with_writes(L, OUT, AD):
        out = []
        for l in L:
            out.append(l)
            m_ = re.match(r"v_cvt_pk_bf16_f32 v(\d+),", l)
            if m_:
                k_ = int(m_.group(1)) - OUT
                if 0 <= k_ < 16 and k_ & 1:
                    out.append("ds_write_b64 v%d, %s offset:%d" % (AD + ((k_ & 7) >> 1), v(OUT + k_ - 1, 2), U * (k_ >> 3)))
        return out
    s0w = with_writes(s0[2:], WF, PHT); s1w = with_writes(s1[2:], WF + 16, PHO)
    vpw = []
    for i in range(4):
        for j in range(2):
            n_ = 2 * i + j
            vpw += [vp[2 * n_], vp[2 * n_ + 1], vw[n_]]
    for l in s0[:2] + s1[:2] + vpw[:12]: a(l)
    lead = vpw[12:] + [None] * max(0, cfg.stag - 12)
    y = lead + s1w
    for i in range(max(len(s0w), len(y))):
        if cfg.smst and i in cfg.smst: stamp(a, cfg, 1 + cfg.smst.index(i))
        if i < len(s0w): a(s0w[i])
        if i < len(y) and y[i]: a(y[i])
    stamp(a, cfg, 5)
    if cfg.prio2 != cfg.prio1: a("s_setprio %d" % cfg.prio2)
    a.bar()
    stamp(a, cfg, 6)
    FP, FV, KV, ZZ, KP = 48, 80, 128, 144, 112
    def kvr(ks):
        return [trd(FP + 4 * ks, KVR, 1024 * ks), trd(FP + 4 * ks + 2, KVR + 1, 1024 * ks), trd(FV + 4 * ks, KVR + 2, 1024 * ks), trd(FV + 4 * ks + 2, KVR + 3, 1024 * ks)]
    for ks in range(4):
        for l in kvr(ks): a(l)
    for g in range(4): a("v_mov_b32 v%d, s44" % (KP + 4 * g + 3))
    for g in range(1, 4): a("v_mov_b32 v%d, 0" % (KP + 4 * g + 2))
    a("v_lshlrev_b32 v13, 7, v0")
    a("v_mov_b32 v14, v16")
    for i in range(1, 4): a("v_xor_b32 v%d, %d, v14" % (14 + i, 32 * i))
    for ks in range(8):
        a(mf32(KV, FP + 4 * ks, FV + 4 * ks, "0" if ks == 0 else None))
        if ks + 4 < 8:
            for l in kvr(ks + 4): a(l)
    zl = [mf16(ZZ, SEL, FP + 4 * ks, "0" if ks == 0 else None) for ks in range(8)]
    for l in zl[:3]: a(l)
    for g in (3, 2, 1, 0):
        if g: a(zl[6 - g])
        else: a(zl[6]); a(zl[7])
        for j in range(2): a(cvt(KP + 4 * g + j, KV + 4 * g + 2 * j, KV + 4 * g + 2 * j + 1))
        if g == 0: a(cvt(KP + 2, ZZ, ZZ))
        a("buffer_store_dwordx4 %s, v44, s[28:31], s57 offen offset:%d sc1" % (v(KP + 4 * g, 4), 256 * g))
    a("s_mov_b64 exec, 15")
    a("buffer_atomic_swap v%d, v13, s[28:31], s58 offen" % (KP + 3))
    a("s_mov_b64 exec, -1")
    stamp(a, cfg, 7)
    if cfg.prio3 != cfg.prio2: a("s_setprio %d" % cfg.prio3)
    a.bar()
    QAA, QR = 48, 80
    fl = ["v_and_b32 v1, 1, v0", "v_lshlrev_b32 v1, 4, v1", "v_mov_b32 v2, 0x3f80",
          "v_lshlrev_b32 v1, v1, v2", "v_bfe_u32 v2, v0, 1, 2", "v_mov_b32 v135, s44"]
    for j in range(4):
        fl += ["v_cmp_eq_u32 vcc, %d, v2" % j, "v_cndmask_b32 v%d, 0, v1, vcc" % (SEL + j)]
    fl += ["v_mov_b32 v2, 0",
           "v_and_b32 v3, 15, v0", "v_lshrrev_b32 v4, 5, v0", "v_bfe_u32 v5, v0, 4, 1",
           "v_lshlrev_b32 v3, 4, v3", "v_lshl_add_u32 v3, v4, 10, v3", "v_lshl_add_u32 v3, v5, 3, v3", "v_add_u32 v20, s56, v3",
           "v_and_b32 v3, 3, v0", "v_bfe_u32 v4, v0, 2, 1", "v_and_b32 v5, 8, v0", "v_lshrrev_b32 v6, 4, v0",
           "v_lshl_add_u32 v3, v3, 1, v5", "v_lshl_add_u32 v3, v4, 4, v3", "v_lshl_add_u32 v3, v6, 9, v3", "v_add_u32 v21, s21, v3"]
    evA = {}
    for i, l in enumerate(fl): evA.setdefault(7 + i * 2 // 3, []).append(lambda l=l: a(l))
    def dma_wo(j):
        a("s_add_u32 m0, s56, %d" % ((4 + j) * U)); a("s_mov_b32 s59, %d" % (j * 64 * 2048))
        for i in range(2):
            a.wait(vm=cfg.pace_o)
            a("buffer_load_dwordx4 v%d, s[32:35], s59 offen offset:%d lds" % (VWO + i, 1024 * i), tag="WO")
    nfree = (cfg.c3b - 8) // 8 + cfg.early
    wof = [8, 9, 10, 11, 12, 13, 14, 15][:nfree]
    assert cfg.wo0 <= len(wof)
    woa = wof[:cfg.wo0]
    woa += [j for j in [0, 8, 1, 9, 2, 10, 3, 11, 12, 13, 6, 14, 7, 15] if j not in woa]
    wo3 = [4, 5]
    G = 136
    def p1loads():
        for i in range(4): a.raw("buffer_load_dwordx4 %s, v46, s[28:31], s18 offen offset:%d sc1" % (v(G + 4 * i, 4), 1024 * i))
    def tagcheck():
        a.raw("s_waitcnt vmcnt(0)"); a.vm = []
        a.raw("v_xor_b32 v3, s44, v%d" % (G + 3))
        for g in range(1, 4): a.raw("v_bitop3_b32 v3, v3, v%d, v135 bitop3:0xf6" % (G + 4 * g + 3))
        a.raw("v_cmp_ne_u32 vcc, 0, v3")
    def poll_issue(sreg, mask):
        a.raw("s_mov_b64 exec, 0x%x" % mask); a.raw("v_mov_b32 v12, 0")
        a.raw("buffer_atomic_or v12, v8, s[28:31], %s offen sc0" % sreg)
        a.raw("s_mov_b64 exec, -1")
    def poll(name, sreg, mask, issued):
        a.raw("s_mov_b32 s45, 0"); a.raw("s_mov_b64 exec, 0x%x" % mask)
        if issued: a.raw("s_branch %s_c" % name)
        a.label(name)
        a.raw("v_mov_b32 v12, 0")
        a.raw("buffer_atomic_or v12, v8, s[28:31], %s offen sc0" % sreg)
        if issued: a.label(name + "_c")
        a.raw("s_waitcnt vmcnt(0)"); a.vm = []
        a.raw("v_cmp_ne_u32 vcc, s44, v12")
        spin_tail(a, name)
        a.raw("s_mov_b64 exec, -1")
    def x0():
        stamp(a, cfg, 8)
        poll("L_f1", "s16", 0xffff, True)
        count(2)
        if cfg.cnt: stamp(a, cfg, 4)
        p1loads()
    def x1():
        a.raw("s_mov_b32 s45, 0"); a.raw("s_branch L_p1c")
        a.label("L_p1")
        p1loads()
        a.label("L_p1c")
        tagcheck()
        spin_tail(a, "L_p1")
        stamp(a, cfg, 9)
        for i in range(4): a(mf16(128, SEL, G + 4 * i, "0" if i == 0 else None))
        a(cvt(132, 128, 129)); a(cvt(133, 130, 131))
        a("v_permlane16_swap_b32 v132, v134")
        a("s_mov_b64 exec, 0xffff")
        a("buffer_store_dwordx4 v[132:135], v9, s[28:31], s22 offen sc1")
        a("s_mov_b64 exec, 15")
        a("buffer_atomic_swap v135, v13, s[28:31], s17 offen")
        a("s_mov_b64 exec, -1")
        stamp(a, cfg, 10)
        if cfg.pfwo == "c3b":
            a.raw("buffer_load_dword v1, v47, s[32:35], s60 offen"); a.vm.append((set(), "PF"))
        for j in woa[:cfg.wo0]: dma_wo(j)
    def c3bA():
        a.bar(lg0=False)
    assert 28 <= cfg.p1chk <= 54 and cfg.f1pos <= cfg.p1pos <= cfg.p1chk and cfg.c3bA <= 32 and cfg.c3bA < cfg.p1chk
    for i, p in enumerate(cfg.ast or []): evA.setdefault(p, []).append(lambda i=i: stamp(a, cfg, 1 + i))
    evA.setdefault(cfg.f1pos, []).append(lambda: poll_issue("s16", 0xffff))
    evA.setdefault(cfg.p1pos, []).append(x0)
    evA.setdefault(cfg.p1chk, []).append(x1)
    evA.setdefault(cfg.c3bA, []).append(c3bA)
    qstream(a, [QUNIT[t] for t in range(NB, 16)], lambda s, ks, rt: CAP + 16 * s + 8 * ks + 4 * rt, QAA, QR, 14, 0, evA, True)
    for i in (0, 4, 1, 5, 2, 6, 3, 7): a("ds_write_b128 v45, %s offset:%d" % (v(QAA + 4 * i, 4), 1024 * i))
    stamp(a, cfg, 11)
    poll_issue("s20", 0xffff)
    a.bar()
    w1 = cfg.wo0 + cfg.wo1
    for j in woa[cfg.wo0:w1]: dma_wo(j)
    a("ds_write_b32 v8, v2 offset:%d" % (U + 256))
    stamp(a, cfg, 12)
    poll("L_f2a", "s20", 0xffff, True)
    count(1)
    if cfg.cnt: stamp(a, cfg, 5)
    spin_head(a, "L_p2")
    for g in range(4): a.raw("buffer_load_dwordx4 %s, v9, s[28:31], s24 offen offset:%d sc1" % (v(G + 4 * g, 4), 1024 * g))
    tagcheck()
    spin_tail(a, "L_p2")
    stamp(a, cfg, 13)
    for g in range(4):
        a("ds_write_b64 v20, %s offset:%d" % (v(G + 4 * g, 2), g * 256))
        if g < 2: a("ds_write_b16 v21, v%d offset:%d" % (G + 4 * g + 2, g * 32))
    for j in woa[w1:]: dma_wo(j)
    stamp(a, cfg, 14)
    a.bar()
    for j in wo3: dma_wo(j)
    a("s_mov_b32 s47, 0")
    if cfg.prio3: a("s_setprio 0")

    a.label("L_G2")
    a.lg = []; a.vm = []
    rb2("s48", "s46")
    a("s_lshl_b32 s46, s48, 2"); a("s_add_u32 s46, s46, s3")
    a("s_lshl_b32 s58, s46, 10"); a("s_lshl_b32 s51, s47, 9"); a("s_add_u32 s58, s58, s51")
    if cfg.g2rot: a("s_bfe_u32 s57, s2, 0x30003")
    else: a("s_mov_b32 s57, 0")
    a("v_add_u32 v8, s57, v0"); a("v_and_b32 v8, 7, v8"); a("v_lshlrev_b32 v8, 2, v8")
    a("s_bfe_u32 s51, s2, 0x20003"); a("s_lshl_b32 s51, s51, 7"); a("s_add_u32 s58, s58, s51"); a("s_add_u32 s58, s58, %d" % WS_F3)
    poll_issue("s58", 0xff)
    a("s_lshl_b32 s59, s46, 16"); a("s_lshl_b32 s51, s47, 12"); a("s_add_u32 s59, s59, s51"); a("s_add_u32 s59, s59, %d" % WS_O)
    a("s_lshl_b32 s51, s47, 10"); a("v_add_u32 v10, s51, v9"); a("v_xor_b32 v11, 1024, v10")
    a("v_lshrrev_b32 v1, 5, v0"); a("v_bfe_u32 v2, v0, 2, 3"); a("v_lshl_add_u32 v1, v1, 4, v2"); a("v_lshlrev_b32 v1, 7, v1")
    a("v_bfe_u32 v2, v0, 3, 2"); a("v_lshl_add_u32 v1, v2, 5, v1"); a("v_and_b32 v2, 3, v0"); a("v_lshl_add_u32 v1, v2, 3, v1")
    a("s_lshl_b32 s51, s47, 13"); a("s_add_u32 s51, s51, %d" % (4 * U)); a("v_add_u32 v26, s51, v1")
    a("s_lshl_b32 s51, s3, 1"); a("s_add_u32 s51, s51, s47"); a("s_lshl_b32 s54, s51, 12")
    a("v_add_u32 v18, s54, v9"); a("v_xor_b32 v19, 4096, v18")
    a("s_lshl_b32 s54, s48, 18"); a("s_lshl_b32 s51, s51, 15"); a("s_add_u32 s54, s54, s51")
    cb128("s51", "s46"); a("s_add_u32 s54, s54, s51")
    a("v_and_b32 v1, 15, v0"); a("v_lshlrev_b32 v20, 11, v1"); a("v_bfe_u32 v1, v0, 4, 1"); a("v_lshl_add_u32 v20, v1, 5, v20")
    a("v_lshrrev_b32 v1, 5, v0"); a("v_lshl_add_u32 v20, v1, 4, v20")
    a("s_mov_b32 s24, 0"); a("s_mov_b32 s25, 0xff")
    a("s_cmp_eq_u32 s47, 0")
    a.force(vm=0)
    a("s_cbranch_scc1 L_G2A")
    a("s_mov_b64 exec, 15")
    a.raw("buffer_atomic_swap v3, v4, s[28:31], s52 offen")
    a("s_mov_b64 exec, -1")
    stamp(a, cfg, 14)
    a("s_branch L_G2C")
    a.label("L_G2A")
    stamp(a, cfg, 15)
    a.raw("s_barrier")
    a.label("L_G2C")
    stamp(a, cfg, 16)
    OF, ACC, RING = 128, 48, 80
    D = 7
    WS_ = [14, 22]
    def rdf(f, t):
        if f < 64:
            n, ct = f >> 2, f & 3
            if "nolds" in cfg.xp and ct >= 2: return
            a(trd(RING + 4 * (f % 8) + 2 * t, WS_[(n >> 1) & 1] + ct, (n & 1) * 4096 + t * 1024))
    nld = [0]
    def sel(k):
        nm = "L_s%d" % k
        if cfg.g2st and k in (1, 2, 4): stamp(a, cfg, {1: 1, 2: 3, 4: 5}[k])
        if k:
            a.raw("s_and_b32 s46, s24, s25"); a.raw("s_cbranch_scc1 %s_k" % nm)
            a.raw("s_waitcnt vmcnt(%d)" % nld[0])
        a.raw("s_mov_b32 s45, 0")
        a.label(nm)
        a.raw("v_cmp_eq_u32 vcc, s44, v12")
        a.raw("s_mov_b32 s24, vcc_lo"); a.raw("s_and_b32 s46, s24, s25")
        a.raw("s_cbranch_scc1 %s_k" % nm)
        a.raw("s_mov_b32 s46, s25")
        a.raw("s_add_u32 s45, s45, 1"); a.raw("s_cmp_ge_u32 s45, %d" % SPIN); a.raw("s_cbranch_scc1 %s_k" % nm)
        poll_issue("s58", 0xff)
        a.raw("s_waitcnt vmcnt(0)")
        a.raw("s_branch %s" % nm)
        a.label(nm + "_k")
        a.raw("s_ff1_i32_b32 s27, s46"); a.raw("s_bitset0_b32 s25, s27"); a.raw("s_add_u32 s27, s27, s57"); a.raw("s_and_b32 s27, s27, 7")
        a.raw("s_lshl_b32 s26, s27, 13"); a.raw("s_add_u32 s53, s59, s26"); a.raw("s_lshl_b32 s26, s27, 14")
        if cfg.g2st and k in (1, 2, 4): stamp(a, cfg, {1: 2, 2: 4, 4: 6}[k])
        w = WS_[k & 1]
        a("v_add_u32 v%d, s26, v26" % w)
        for i in range(1, 4): a("v_xor_b32 v%d, %d, v%d" % (w + i, 32 * i, w))
    def repoll(k):
        a.raw("s_and_b32 s46, s24, s25"); a.raw("s_cbranch_scc1 L_r%d" % k)
        poll_issue("s58", 0xff)
        a.label("L_r%d" % k)
        nld[0] = 0
    def old(n, i):
        if n < 16:
            if i == 1 and n & 1 == 0: sel(n >> 1)
            if n == 0 and i == 1: stamp(a, cfg, 17); count(3)
            if not ("noload" in cfg.xp and i == 0):
                a("buffer_load_dwordx4 %s, v%d, s[28:31], s53 offen offset:%d %s" % (v(OF + 8 * n + 4 * i, 4), 10 + i, 2048 * (n & 1), cfg.osc))
                nld[0] += 1
            if 2 * (n & 1) + 1 - i == cfg.rp and n < 14: repoll(n >> 1)
    assert 2 <= cfg.g2_pre <= 4
    for n in range(cfg.g2_pre): old(n, 1); old(n, 0)
    for f in range(D): rdf(f, 0); rdf(f, 1)
    for f in range(64):
        n, ct = f >> 2, f & 3
        for i in (1, 0):
            if not ("nomf" in cfg.xp and ct & 1): a(mf16(ACC + 16 * i + 4 * ct, RING + 4 * (f % 8), OF + 8 * n + 4 * i, "0" if n == 0 else None))
            rdf(f + D, 1 - i)
        if cfg.g2st and f in (0, 16, 32, 48, 56): stamp(a, cfg, {0: 7, 16: 8, 32: 9, 48: 10, 56: 11}[f])
        if ct == 0: old(n + cfg.g2_pre, 1)
        if ct == 2: old(n + cfg.g2_pre, 0)
    stamp(a, cfg, 18)
    for ct in range(4): a("ds_write_b128 v18, %s offset:%d" % (v(ACC + 16 + 4 * ct, 4), 1024 * ct))
    a.bar()
    for ct in range(4): a(rd128(RING + 4 * ct, 19, 1024 * ct))
    for j in range(2):
        for ct in (2 * j, 2 * j + 1):
            for h in range(2): a("v_pk_add_f32 %s, %s, %s" % (v(ACC + 4 * ct + 2 * h, 2), v(ACC + 4 * ct + 2 * h, 2), v(RING + 4 * ct + 2 * h, 2)))
        o = 112 + 4 * j
        for k in range(4): a(cvt(o + k, ACC + 8 * j + 2 * k, ACC + 8 * j + 2 * k + 1))
        a("v_permlane16_swap_b32 v%d, v%d" % (o, o + 2)); a("v_permlane16_swap_b32 v%d, v%d" % (o + 1, o + 3))
        a("buffer_store_dwordx4 %s, v20, s[36:39], s54 offen offset:%d %s" % (v(o, 4), 64 * j, cfg.outsc))
    a("s_or_b32 s46, s2, s3"); a("s_or_b32 s46, s46, s47")
    a("s_cmp_lg_u32 s46, 0"); a("s_cbranch_scc1 L_noep")
    a("v_mov_b32 v1, s44"); a("v_mov_b32 v2, 0"); a("s_mov_b64 exec, 1")
    a("buffer_store_dword v1, v2, s[28:31], 0 offen sc1")
    a("s_mov_b64 exec, -1")
    a.label("L_noep")
    if cfg.amp:
        idx, sh, wg = cfg.amp
        a.raw("s_waitcnt vmcnt(0)")
        stamp(a, cfg, 19)
        a.raw("s_waitcnt lgkmcnt(0)")
        a("s_or_b32 s46, s3, s47"); a("s_cmp_lg_u32 s46, 0"); a("s_cbranch_scc1 L_end")
        a("s_cmp_lg_u32 s2, %d" % wg); a("s_cbranch_scc1 L_end")
        a("s_sub_u32 s46, s%d, s%d" % (ST0 + 2 * idx, ST0)); a("s_lshl_b32 s46, s46, %d" % sh)
        a("s_min_u32 s46, s46, 40000"); a("s_mov_b32 s45, 0")
        a.label("L_amp")
        a.raw("s_memrealtime s[50:51]"); a.raw("s_waitcnt lgkmcnt(0)")
        a("s_sub_u32 s50, s50, s%d" % (ST0 + 38)); a("s_cmp_ge_u32 s50, s46"); a("s_cbranch_scc1 L_end")
        a("s_add_u32 s45, s45, 1"); a("s_cmp_lt_u32 s45, 100000"); a("s_cbranch_scc1 L_amp")
    elif cfg.stamps:
        a.raw("s_waitcnt vmcnt(0)")
        stamp(a, cfg, 19)
        a.raw("s_waitcnt lgkmcnt(0)")
        a("s_cmp_lg_u32 s3, 0"); a("s_cbranch_scc1 L_end")
        a("s_mul_i32 s60, s2, %d" % (NST * 8)); a("s_lshl_b32 s61, s47, 16"); a("s_add_u32 s60, s60, s61"); a("s_add_u32 s60, s60, %d" % WS_ST)
        a("v_mov_b32 v2, s60"); a("s_mov_b64 exec, 1")
        for i in range(NST):
            a("v_mov_b32 v4, s%d" % (ST0 + 2 * i)); a("v_mov_b32 v5, s%d" % (ST0 + 1 + 2 * i))
            a.raw("buffer_store_dwordx2 v[4:5], v2, s[28:31], 0 offen offset:%d" % (8 * i)); a.raw("s_waitcnt vmcnt(0)")
    a.label("L_end")
    a.raw("s_endpgm")
    return a

def build(cfg, path):
    a = gen(cfg)
    lines = hazard.fix(a.lines, verbose=False)
    for p in hazard.check_backedges(lines): print("BACKEDGE HAZARD:", p)
    out = HEADER + "; @launch grid=(256,1,1) block=(512,1,1) lds=163840\n"
    out += '.amdgcn_target "amdgcn-amd-amdhsa--gfx950"\n.text\n' + "\n".join(lines) + "\n"
    out += '.section .rodata,"a"\n.p2align 6\n' + kd(NAME, 256, 102 if cfg.stamps else 64, 256)
    open(path, "w").write(out)

def mk(path, **kw):
    c = Cfg()
    for k, x in kw.items():
        assert hasattr(c, k), k
        setattr(c, k, x)
    build(c, path)

if __name__ == "__main__":
    mk("v8.s")
    B = dict(stamps=True)
    mk("v8a_st.s", **B)
    mk("v8b_st.s", kx=True, **B)
    mk("v8c_st.s", g2_pre=4, **B)
```

```python
import sys, re
from asmlib import *
import hazard
from gen3 import (E, mf16, mf32, trd, rd128, cvt, pack_pair, softmax, ph_addr, wlane, xlane, wphi_lane,
                  wphi_reads, spin_head, spin_tail, stamp, NAME, LOG2E, TAGC, NST, ST0, U, WS_ST, SPIN)

WS_P2  = 0x40000
WS_F1  = 0x80000
WS_F2  = 0x88000
WS_F3  = 0x90000
WS_P1  = 0x400000
WS_O   = 0x800000
TMASK = 0xBFFFBFFF

class Cfg:
    stamps = False
    cnt = False
    pfwo = 'c1'
    smst = None
    pace_m = None
    pace_t0 = 2
    pace_q = None
    pace_p = None
    pace_o = None
    warm = True
    f1pos = 24
    hlp = 1
    hpx = 3
    bst = None
    ast = None
    pfpat = 'row'
    prest = -1
    amp = None
    scramble = False
    outsc = "sc0 sc1"
    rot = "r4b"
    prioA = 0
    prio1 = 1
    prio2 = 1
    prio3 = 1
    early = 0
    c2w = 4
    c3a = 24
    g2_pre = 3
    stag = 40
    wo1 = 0
    c5b = True
    p1pos = 31
    touch = False
    q14 = 4
    q15 = 2
    qlate = 0
    c3bA = 30
    c3b = 44
    c4o = 3
    p1chk = 40
    wo0 = 4
    kx = False
    g2dyn = True
    rp = 0
    cpf = 0
    cptop = True
    xp = ''
    g2rot = True
    osc = 'sc1'
    g2st = False

def slot(t): return (t + 2) % 3

def qstream(a, units, xreg, ACC, RING, WR, base, events, first_c):
    D = 7
    frs = [(s, ks, ct) for s in range(len(units)) for ks in range(2) for ct in range(4)]
    st = {"base": base}
    def read(f, t):
        if t == 0:
            for ev in events.get(f, []): ev()
        if f >= len(frs): return
        s, ks, ct = frs[f]
        off = units[s] * U - st["base"]
        if off < 0 or off + U > 65536:
            nb = units[s] * U
            d = nb - st["base"]
            for i in range(4):
                a(("v_add_u32 v%d, %d, v%d" % (WR + i, d, WR + i)) if d > 0 else ("v_subrev_u32 v%d, %d, v%d" % (WR + i, -d, WR + i)))
            st["base"] = nb; off = 0
        a(trd(RING + 4 * (f % 8) + 2 * t, WR + ct, off + ks * 4096 + t * 512))
    for f in range(D): read(f, 0); read(f, 1)
    for f, (s, ks, ct) in enumerate(frs):
        for rt in range(2):
            a(mf16(ACC + 16 * rt + 4 * ct, RING + 4 * (f % 8), xreg(s, ks, rt), "0" if (first_c and f < 4) else None))
            read(f + D, rt)

def gen(cfg):
    a = E()
    NB = 10; NA = 6
    kernel_begin(a, NAME)
    a("s_cmp_ge_u32 s2, 256"); a("s_cbranch_scc1 L_end")
    a("s_load_dwordx8 s[4:11], s[0:1], 0")
    a("s_load_dwordx2 s[12:13], s[0:1], 32")
    a("s_load_dwordx2 s[14:15], s[0:1], 48")
    stamp(a, cfg, 0)
    if cfg.scramble:
        a("s_lshr_b32 s46, s2, 3"); a("s_lshr_b32 s47, s2, 5"); a("s_xor_b32 s46, s46, s47"); a("s_and_b32 s46, s46, 7"); a("s_xor_b32 s2, s2, s46")
    a("v_lshrrev_b32 v1, 6, v0"); a("v_and_b32 v0, 63, v0")
    a("s_and_b32 s51, s2, 1"); a("v_readfirstlane_b32 s3, v1")
    def codepf():
        a("s_cmp_lg_u32 s3, 7"); a("s_cbranch_scc1 L_cp")
        a("s_getpc_b64 s[24:25]")
        a.label("L_pc")
        a("s_sub_u32 s24, s24, L_pc-%s" % NAME); a("s_subb_u32 s25, s25, 0")
        a("s_mov_b32 s26, L_end-%s" % NAME); a("s_mov_b32 s27, 0x20000")
        a("s_lshr_b32 s46, s2, 3"); a("s_mul_i32 s46, s46, %d" % (64 * cfg.cpf))
        a("v_lshlrev_b32 v1, 6, v0"); a("v_add_u32 v1, s46, v1")
        a("s_mov_b64 exec, 0x%x" % ((1 << cfg.cpf) - 1))
        a.raw("buffer_load_dword v47, v1, s[24:27], 0 offen")
        a("s_mov_b64 exec, -1")
        a.label("L_cp")
    if cfg.cpf and cfg.cptop: codepf()
    a("s_bfe_u32 s52, s2, 0x20001")
    a("s_bfe_u32 s53, s2, 0x30003")
    a("s_lshr_b32 s54, s2, 6")
    if cfg.hpx: a("s_xor_b32 s54, s54, %d" % cfg.hpx)
    a("s_lshl_b32 s48, s51, 3"); a("s_add_u32 s48, s48, s53")
    a("s_lshl_b32 s49, s52, 2"); a("s_add_u32 s49, s49, s54")
    a("s_mov_b32 s19, 0x20000"); a("s_mov_b32 s23, 0x20000")
    a("s_cmp_ge_u32 s3, 4"); a("s_cbranch_scc1 L_A")

    def cb128(d, t):
        a("s_bfe_u32 %s, s2, 0x30003" % d); a("s_bfe_u32 %s, s2, 0x10002" % t); a("s_lshl_b32 %s, %s, 3" % (t, t))
        a("s_add_u32 %s, %s, %s" % (d, d, t)); a("s_lshl_b32 %s, %s, 7" % (d, d))
    def rb2(d, t):
        a("s_and_b32 %s, s2, 3" % d); a("s_lshl_b32 %s, %s, 2" % (d, d)); a("s_lshr_b32 %s, s2, 6" % t); a("s_add_u32 %s, %s, %s" % (d, d, t))
    def srd_rest():
        a("s_mov_b32 s31, 0x20000"); a("s_mov_b32 s35, 0x20000"); a("s_mov_b32 s39, 0x20000")
        a("s_mov_b32 s28, s14"); a("s_mov_b32 s29, s15"); a("s_mov_b32 s30, 0x10000000")
        cb128("s46", "s47")
        a("s_add_u32 s32, s10, s46"); a("s_addc_u32 s33, s11, 0"); a("s_sub_u32 s34, %d, s46" % (1024 * 2048))
        a("s_mov_b32 s36, s12"); a("s_mov_b32 s37, s13"); a("s_mov_b32 s38, %d" % (2048 * 2048))
        a("s_mov_b32 s40, 0x%x" % LOG2E); a("s_mov_b32 s41, 0x%x" % LOG2E)
        a("s_mov_b32 s42, 0x%x" % (LOG2E | 0x80000000)); a("s_mov_b32 s43, 0x%x" % (LOG2E | 0x80000000))
    def mktag():
        a.raw("s_waitcnt lgkmcnt(0)")
        a("s_add_u32 s44, s44, 0x%x" % TAGC); a("s_and_b32 s44, s44, 0x%x" % TMASK)
    def count(idx):
        if cfg.cnt: a.raw("s_mov_b32 s%d, s45" % (ST0 + 2 * idx)); a.raw("s_mov_b32 s%d, 0" % (ST0 + 2 * idx + 1))

    QUNIT = {0: 12, 1: 13, 2: 14, 3: 15, 4: 16, 5: 17, 6: 18, 7: 19, 8: 10, 9: 11, 10: 0, 11: 1, 12: 4, 13: 5, 14: 6, 15: 7}

    XR, WR, VQ, VX, VW, BWP = 10, 10, 14, 16, 20, 16
    BACC, BRING, BCAP = 32, 64, 96
    if cfg.rot == "r4":
        a("s_add_u32 s50, s53, s54"); a("s_and_b32 s50, s50, 1"); a("s_lshl_b32 s50, s50, 1")
        a("s_add_u32 s46, s51, s52"); a("s_and_b32 s46, s46, 1"); a("s_add_u32 s50, s50, s46"); a("s_lshl_b32 s50, s50, 2")
    elif cfg.rot == "r4b":
        a("s_add_u32 s50, s51, s52"); a("s_and_b32 s50, s50, 1"); a("s_lshl_b32 s50, s50, 1")
        a("s_add_u32 s46, s53, s54"); a("s_and_b32 s46, s46, 1"); a("s_add_u32 s50, s50, s46"); a("s_lshl_b32 s50, s50, 2")
    elif isinstance(cfg.rot, tuple):
        first = True
        for c, r in zip(cfg.rot, ("s51", "s52", "s53", "s54")):
            if c:
                a("s_mul_i32 %s, %s, %d" % ("s50" if first else "s46", r, c))
                if not first: a("s_add_u32 s50, s50, s46")
                first = False
        a("s_and_b32 s50, s50, 15")
    else:
        a("s_mov_b32 s50, 0")
    a("s_lshl_b32 s55, s3, 12"); a("s_lshl_b32 s56, s3, 11")
    a("v_lshrrev_b32 v3, 3, v0"); a("v_and_b32 v4, 7, v0")
    a("v_lshrrev_b32 v5, 4, v0")
    a("v_xor_b32 v6, v5, v4"); a("v_lshlrev_b32 v6, 4, v6")
    a("s_lshl_b32 s46, s3, 16")
    a("v_lshl_add_u32 v6, v3, 11, v6"); a("v_add_u32 v%d, s46, v6" % VX)
    a("v_xor_b32 v6, 64, v%d" % VX)
    a("v_add_u32 v%d, %d, v6" % (VX + 1, 8 * 2048 - 1024))
    a("v_add_u32 v%d, %d, v%d" % (VX + 2, 16 * 2048 - 2048, VX))
    a("v_add_u32 v%d, %d, v6" % (VX + 3, 24 * 2048 - 3072))
    a("v_and_b32 v5, 1, v5"); a("v_lshlrev_b32 v5, 1, v5"); a("v_xor_b32 v5, v5, v4"); a("v_lshlrev_b32 v5, 4, v5")
    a("v_mul_u32_u24 v6, 6144, v3")
    a("s_mul_i32 s46, s3, %d" % (16 * 6144))
    a("s_and_b32 s47, s49, 1"); a("s_lshl_b32 s47, s47, 7")
    a("s_add_u32 s57, s46, s47"); a("s_add_u32 s57, s57, 2048")
    a("s_xor_b32 s47, s47, 128"); a("s_add_u32 s46, s46, s47")
    a("v_add3_u32 v%d, v5, v6, s57" % VW)
    a("v_add3_u32 v%d, v5, v6, s46" % VQ)
    a("v_xor_b32 v7, 64, v%d" % VW); a("v_add_u32 v%d, %d, v7" % (VW + 1, 8 * 6144 - 1024))
    a("v_add_u32 v%d, 2048, v%d" % (VW + 2, VW)); a("v_add_u32 v%d, 2048, v%d" % (VW + 3, VW + 1))
    a("s_lshl_b32 s46, s48, 18"); a("s_mov_b32 s18, %d" % (128 * 2048))
    a("s_lshr_b32 s47, s49, 1"); a("s_lshl_b32 s47, s47, 8")
    a("s_sub_u32 s22, %d, s47" % (1024 * 6144))
    a("s_lshl_b32 s58, s50, 7"); a("s_mul_i32 s59, s50, %d" % (64 * 6144))
    a("s_add_u32 m0, s55, %d" % (2 * U * slot(0)))
    if cfg.cnt: stamp(a, cfg, 4)
    a.raw("s_waitcnt lgkmcnt(0)")
    if cfg.cnt: stamp(a, cfg, 6)
    a("s_add_u32 s16, s4, s46"); a("s_addc_u32 s17, s5, 0")
    a("s_add_u32 s20, s6, s47"); a("s_addc_u32 s21, s7, 0")

    def kst(t):
        if cfg.kx: a("s_xor_b32 s57, s50, %d" % t)
        else: a("s_add_u32 s57, s50, %d" % t); a("s_and_b32 s57, s57, 15")
    def dma_stage(t, first=False):
        tag = "S%d" % t
        if not first:
            kst(t); a("s_add_u32 m0, s55, %d" % (2 * U * slot(t))); a("s_lshl_b32 s58, s57, 7"); a("s_mul_i32 s59, s57, %d" % (64 * 6144))
        pm = cfg.pace_m if t >= cfg.pace_t0 else None
        for j in range(4):
            a.wait(vm=pm)
            a("buffer_load_dwordx4 v%d, s[16:19], s58 offen offset:%d lds" % (VX + j, 1024 * j), tag=tag)
        for k in range(2):
            a("s_add_u32 m0, s56, %d" % ((6 + 2 * slot(t) + k) * U))
            for i in range(2):
                a.wait(vm=pm)
                a("buffer_load_dwordx4 v%d, s[20:23], s59 offen offset:%d lds" % (VW + 2 * k + i, 1024 * i), tag=tag)
    def dma_q(t):
        kst(t); a("s_add_u32 m0, s56, %d" % (QUNIT[t] * U)); a("s_mul_i32 s59, s57, %d" % (64 * 6144))
        for i in range(2):
            a.wait(vm=cfg.pace_q)
            a("buffer_load_dwordx4 v%d, s[20:23], s59 offen offset:%d lds" % (VQ + i, 1024 * i), tag="Q%d" % t)

    dma_stage(0, True)
    a.raw("s_load_dword s44, s[14:15], 0")
    dma_stage(1)
    stamp(a, cfg, 1)
    a("v_xor_b32 v7, 64, v%d" % VQ); a("v_add_u32 v%d, %d, v7" % (VQ + 1, 8 * 6144 - 1024))
    srd_rest()
    a("s_mov_b32 s10, 65536"); a("s_mov_b32 s11, 0x20000")
    xlane(a, XR, 1, 2)
    a("v_add_u32 v%d, s55, v%d" % (XR, XR)); a("v_add_u32 v%d, s55, v%d" % (XR + 1, XR + 1))
    a("v_lshlrev_b32 v9, 4, v0")
    wphi_lane(a, 8, 1, 2)
    a("s_and_b32 s46, s49, 1"); a("s_lshl_b32 s46, s46, 12"); a("s_xor_b32 s46, s46, 4096"); a("s_add_u32 s46, s46, %d" % (19 * U))
    a("v_add_u32 v8, s46, v8")
    mktag()
    def bx(s, ks, rt): return BCAP + 16 * s + 8 * ks + 4 * rt
    qorder = [0, 1, 2, 3, 10, 11, 4, 5, 6, 7]
    def pfw():
        a.wait(vm=cfg.pace_p)
        a.raw("buffer_load_dword v1, v3, s[32:35], s46 offen"); a.vm.append((set(), "PF"))
    def pfs(i0, i1):
        for i in range(i0, i1): a.raw("s_load_dwordx2 s[26:27], s[24:25], 0x%x" % ((i >> 2) * 2048 + (i & 3) * 256 + 124))
    for t in range(16):
        a.bar(["S%d" % t])
        if t == 0: stamp(a, cfg, 2)
        if t == 4 and not cfg.cnt: stamp(a, cfg, 3)
        if t == 8 and not cfg.cnt: stamp(a, cfg, 4)
        if t == 15: stamp(a, cfg, 5)
        if t < NB:
            for ks in range(2):
                for rt in range(2): a(rd128(bx(t, ks, rt), XR + ks, 2 * U * slot(t) + 2048 * rt))
        if t == 0:
            a("s_lshr_b32 s46, s49, 1"); a("s_lshl_b32 s46, s46, 13"); a("s_add_u32 s46, s46, s56")
            a("s_add_u32 m0, s56, %d" % (19 * U))
            for i in range(2): a("buffer_load_dwordx4 v9, s[8:11], s46 offen offset:%d lds" % (1024 * i), tag="WP")
        if t + 2 < 16: dma_stage(t + 2)
        if t == 13:
            wlane(a, WR, 3, 4)
            a("v_add_u32 v%d, %d, v%d" % (WR, QUNIT[0] * U, WR))
            for i in range(1, 4): a("v_xor_b32 v%d, %d, v%d" % (WR + i, 32 * i, WR))
            a("s_lshr_b32 s46, s3, 1"); a("s_mul_i32 s46, s46, %d" % (6 * U)); a("s_and_b32 s47, s3, 1"); a("s_lshl_b32 s47, s47, 13")
            a("s_add_u32 s46, s46, s47"); a("s_add_u32 s46, s46, %d" % (2 * U)); a("v_add_u32 v5, s46, v9")
            a("v_and_b32 v3, 15, v0"); a("v_lshlrev_b32 v6, 4, v3"); a("v_bfe_u32 v3, v0, 4, 1"); a("v_lshl_add_u32 v6, v3, 10, v6")
            a("v_lshrrev_b32 v3, 5, v0"); a("v_lshl_add_u32 v6, v3, 8, v6")
            a("v_lshrrev_b32 v4, 2, v0"); a("v_lshrrev_b32 v7, 4, v0"); a("v_xor_b32 v4, v4, v7"); a("v_and_b32 v4, 1, v4")
            a("v_lshlrev_b32 v3, 4, v3"); a("v_lshl_add_u32 v7, v4, 8, v3"); a("v_add_u32 v7, %d, v7" % U)
            a("s_lshl_b32 s46, s48, 2"); a("s_add_u32 s46, s46, s3"); a("s_xor_b32 s47, s49, 1")
            a("s_lshl_b32 s51, s46, 16"); a("s_lshl_b32 s54, s47, 12"); a("s_add_u32 s51, s51, s54"); a("s_add_u32 s51, s51, %d" % WS_O)
            a("s_lshl_b32 s52, s46, 10"); a("s_and_b32 s54, s47, 1"); a("s_lshl_b32 s54, s54, 9"); a("s_add_u32 s52, s52, s54")
            a("s_lshr_b32 s54, s47, 1"); a("s_lshl_b32 s54, s54, 2"); a("s_add_u32 s52, s52, s54"); a("s_add_u32 s52, s52, %d" % WS_F3)
            a("s_mov_b32 s53, 0x358637bd")
            for l in wphi_reads(BWP, 8, 0) + wphi_reads(BWP + 8, 8, 2048): a(l)
            if cfg.pfpat == "col":
                a("v_lshlrev_b32 v3, 11, v0"); a("s_lshr_b32 s46, s2, 6"); a("s_lshl_b32 s46, s46, 19"); a("s_lshl_b32 s47, s3, 17"); a("s_add_u32 s46, s46, s47")
            else:
                a("v_lshrrev_b32 v3, 3, v0"); a("v_and_b32 v4, 7, v0"); a("v_lshlrev_b32 v4, 7, v4"); a("v_lshl_add_u32 v3, v3, 11, v4")
                a("s_lshr_b32 s46, s2, 3"); a("s_lshl_b32 s46, s46, 16"); a("s_lshl_b32 s47, s3, 14"); a("s_add_u32 s46, s46, s47")
                a("s_bfe_u32 s47, s2, 0x30003"); a("s_lshl_b32 s47, s47, 7"); a("s_sub_u32 s46, s46, s47")
                if cfg.pfwo == "scalar":
                    a("s_add_u32 s24, s32, s46"); a("s_addc_u32 s25, s33, 0")
        if t == 14:
            if cfg.pfwo == "t14": pfw()
            if cfg.pfwo == "scalar": pfs(0, 12)
            for q in qorder[:cfg.q14]: dma_q(q)
        if t == 15:
            if cfg.pfwo == "t15": pfw()
            for q in qorder[cfg.q14:cfg.q14 + cfg.q15]: dma_q(q)
    a.bar(["Q%d" % q for q in range(cfg.early)])
    if not cfg.cnt: stamp(a, cfg, 6)
    if cfg.pfwo == "c1a": pfw()
    if cfg.pfwo == "scalar": pfs(12, 22)
    rest = [q for q in (10, 11, 12, 13, 0, 1, 2, 3, 4, 5, 6, 7, 8, 9) if q not in qorder[:cfg.q14 + cfg.q15]]
    late = rest[len(rest) - cfg.qlate:]
    for q in rest[:len(rest) - cfg.qlate]: dma_q(q)
    if cfg.pfwo == "c1": pfw()
    if cfg.pfwo == "scalar": pfs(22, 32)
    if cfg.early:
        qstream(a, [QUNIT[t] for t in range(cfg.early)], bx, BACC, BRING, WR, QUNIT[0] * U, {}, True)
    a.bar(["Q%d" % q for q in range(cfg.early + cfg.c2w)])
    stamp(a, cfg, 7)
    ev = {}
    def add(pos, f): ev.setdefault(pos, []).append(f)
    for i, q in enumerate(late): add(7 + 2 * i, lambda q=q: dma_q(q))
    assert cfg.c3b <= 8 * (min(late + [10]) - cfg.early)
    def c3a():
        a.bar(["Q%d" % q for q in range(16) if q not in late], lg0=False); stamp(a, cfg, 8)
        for q in (14, 15): dma_q(q)
        if cfg.pfwo == "c3a":
            a.raw("buffer_load_dword v1, v3, s[32:35], s46 offen"); a.vm.append((set(), "PF"))
    assert cfg.c3a <= 8 * cfg.c2w
    add(cfg.c3a, c3a)
    QPR = BCAP
    def c3b():
        a.bar(["Q14", "Q15"], lg0=False); stamp(a, cfg, 9)
    add(cfg.c3b, c3b)
    for i, p in enumerate(cfg.bst or []): add(p, lambda i=i: stamp(a, cfg, 1 + i))
    def c4():
        a.bar()
        for i in range(8): a(rd128(QPR + 4 * i, 5, 1024 * i))
    add(8 * (NB - cfg.early) + cfg.c4o, c4)
    qstream(a, [QUNIT[t] for t in range(cfg.early, NB)], lambda s, ks, rt: bx(s + cfg.early, ks, rt), BACC, BRING, WR, QUNIT[0] * U, ev, cfg.early == 0)
    stamp(a, cfg, 10)
    for ct in range(4):
        for rt in range(2):
            for h in range(2):
                r = 16 * rt + 4 * ct + 2 * h
                a("v_pk_add_f32 %s, %s, %s" % (v(BACC + r, 2), v(BACC + r, 2), v(QPR + r, 2)))
    PQ = 96; QA = BACC
    l0 = pack_pair(64, QA, QA + 16, QA + 4, QA + 20) + softmax(64, BWP, 160, 176, 224, 80, PQ)
    l1 = pack_pair(72, QA + 8, QA + 24, QA + 12, QA + 28) + softmax(72, BWP + 8, 192, 208, 240, 84, PQ + 16)
    for x, y in zip(l0, l1): a(x); a(y)
    a("v_mov_b32 v3, s44"); a("v_lshlrev_b32 v4, 7, v0")
    stamp(a, cfg, 11)
    a.bar()
    stamp(a, cfg, 12)
    KF, ZF, NUM, DEN, OP = 160, 192, 32, 64, 128
    for e in range(2):
        for i in range(4): a(rd128(ZF + 16 * e + 4 * i, 7, 128 * e + 32 * i))
        for i in range(4): a(rd128(KF + 16 * e + 4 * i, 9, 4096 * e + 1024 * i))
    for e in range(2):
        for i in range(4): a(mf16(DEN + 4 * e, ZF + 16 * e + 4 * i, PQ + 16 * e + 4 * i, "0" if i == 0 else None))
        for i in range(4): a(mf32(NUM + 16 * e, KF + 16 * e + 4 * i, PQ + 16 * e + 4 * i, "0" if i == 0 else None))
    for e in range(2):
        d = DEN + 4 * e; nu = NUM + 16 * e
        a("v_add_f32 v%d, s53, v%d" % (d, d)); a("v_rcp_f32 v%d, v%d" % (d, d))
        for m_ in range(2):
            for j in range(4 * m_, 4 * m_ + 4): a("v_pk_mul_f32 %s, %s, %s op_sel_hi:[1,0]" % (v(nu + 2 * j, 2), v(nu + 2 * j, 2), v(d, 2)))
            for j in range(4 * m_, 4 * m_ + 4): a(cvt(OP + 8 * e + j, nu + 2 * j, nu + 2 * j + 1))
            a("buffer_store_dwordx4 %s, v6, s[28:31], s51 offen offset:%d sc1" % (v(OP + 8 * e + 4 * m_, 4), 2048 * e + 512 * m_))
    a.bar()
    stamp(a, cfg, 13)
    a("s_mov_b32 s47, 1")
    a("s_branch L_G2")
    a.lg = []; a.vm = []

    a.label("L_A")
    XA, WA, WPK = 10, 14, 24
    KVR, SEL, PHO, PHT, VWO = 32, 36, 4, 40, 18
    KA, VA, XT, WF, CAP = 48, 80, 112, 128, 160
    if cfg.prioA == "c3":
        a("s_and_b32 s46, s49, 7"); a("s_cmp_eq_u32 s46, 3"); a("s_cbranch_scc1 L_np"); a("s_setprio 1"); a.label("L_np")
    elif cfg.prioA == "fol":
        a("s_and_b32 s46, s49, 7"); a("s_cmp_eq_u32 s46, 3"); a("s_cbranch_scc1 L_np")
        a("s_add_u32 s46, s53, s54"); a("s_bitcmp1_b32 s46, 0"); a("s_cbranch_scc1 L_np"); a("s_setprio 1"); a.label("L_np")
    elif cfg.prioA: a("s_setprio %d" % cfg.prioA)
    if cfg.cpf and not cfg.cptop: codepf()
    a("s_sub_u32 s3, s3, 4")
    if cfg.hlp:
        assert cfg.rot == "r4b"
        a("s_and_b32 s61, s52, 1"); a("s_lshr_b32 s46, s54, 1"); a("s_or_b32 s61, s61, s46"); a("s_lshr_b32 s46, s3, 1"); a("s_or_b32 s61, s61, s46")
        a("s_add_u32 s46, s51, s52"); a("s_add_u32 s46, s46, s3"); a("s_and_b32 s46, s46, 1"); a("s_lshl_b32 s46, s46, 9")
        a("s_lshl_b32 s47, s54, 5"); a("s_add_u32 s46, s46, s47"); a("s_lshl_b32 s47, s53, 2"); a("s_add_u32 s46, s46, s47")
        a("v_lshrrev_b32 v1, 3, v0"); a("v_bfe_u32 v2, v0, 1, 2"); a("v_lshl_add_u32 v1, v1, 6, v2"); a("v_add_u32 v1, s46, v1")
        a("v_mul_u32_u24 v1, 6144, v1"); a("v_and_b32 v2, 1, v0"); a("v_lshl_add_u32 v47, v2, 11, v1")
        a("s_lshl_b32 s60, s52, 9"); a("s_add_u32 s60, s60, %d" % (2048 + 384))
        a.raw("s_waitcnt lgkmcnt(0)")
        a("s_mov_b32 s4, s6"); a("s_mov_b32 s5, s7"); a("s_mov_b32 s6, %d" % (1024 * 6144)); a("s_mov_b32 s7, 0x20000")
        if cfg.hlp == 1:
            a("s_cmp_lg_u32 s61, 0"); a("s_cbranch_scc1 L_h0")
        else:
            a("s_or_b32 s46, s61, s3"); a("s_cmp_lg_u32 s46, 0"); a("s_cbranch_scc1 L_h0")
        a.raw("buffer_load_dword v47, v47, s[4:7], s60 offen")
        a.label("L_h0")
        a("s_xor_b32 s46, s3, 1"); a("s_or_b32 s61, s61, s46")
    a("s_lshl_b32 s55, s3, 12"); a("s_lshl_b32 s56, s3, 11")
    a("s_and_b32 s52, s3, 1"); a("s_lshr_b32 s51, s3, 1")
    xlane(a, XA, 1, 2)
    a("s_xor_b32 s46, s55, 4096")
    a("v_add_u32 v%d, s46, v%d" % (XA + 2, XA)); a("v_add_u32 v%d, s46, v%d" % (XA + 3, XA + 1))
    a("v_add_u32 v%d, s55, v%d" % (XA, XA)); a("v_add_u32 v%d, s55, v%d" % (XA + 1, XA + 1))
    wlane(a, 16, 1, 2)
    a("s_lshl_b32 s46, s52, 6"); a("v_xor_b32 v%d, s46, v16" % WA)
    a("v_add_u32 v%d, %d, v%d" % (WA, 6 * U, WA)); a("v_xor_b32 v%d, 32, v%d" % (WA + 1, WA))
    wphi_lane(a, 17, 1, 2)
    a("s_and_b32 s46, s49, 1"); a("s_lshl_b32 s46, s46, 12")
    a("s_lshl_b32 s47, s52, 11"); a("s_add_u32 s46, s46, s47"); a("s_add_u32 s46, s46, %d" % (19 * U))
    a("v_add_u32 v17, s46, v17")
    a("v_lshlrev_b32 v9, 4, v0"); a("v_lshlrev_b32 v8, 2, v0")
    a("v_and_b32 v1, 15, v0"); a("v_lshlrev_b32 v1, 6, v1")
    a("v_lshrrev_b32 v2, 5, v0"); a("v_bfe_u32 v3, v0, 2, 2"); a("v_xor_b32 v2, v2, v3"); a("v_lshl_add_u32 v1, v2, 4, v1")
    a("v_lshrrev_b32 v2, 3, v0"); a("v_xor_b32 v2, v2, v0"); a("v_bfe_u32 v2, v2, 1, 1"); a("v_lshl_add_u32 v1, v2, 3, v1")
    a("s_lshl_b32 s54, s52, 13"); a("s_add_u32 s54, s54, %d" % (6 * U))
    a("s_add_u32 s46, s54, s56")
    a("v_add_u32 v20, s46, v1"); a("v_xor_b32 v21, 32, v20"); a("v_xor_b32 v22, 2048, v20"); a("v_xor_b32 v23, 2048, v21")
    a("s_mul_i32 s53, s52, %d" % (6 * U)); a("s_add_u32 s53, s53, %d" % (2 * U))
    a("s_add_u32 s46, s53, s56")
    ph_addr(a, PHO, 1, 2, "s46")
    a("v_and_b32 v1, 2, v0"); a("v_lshlrev_b32 v1, 2, v1")
    for g in range(4): a("v_xor_b32 v%d, v1, v%d" % (PHO + g, PHO + g))
    for g in range(4): a("v_xor_b32 v%d, 2048, v%d" % (PHT + g, PHO + g))
    a("v_lshrrev_b32 v1, 5, v0"); a("v_bfe_u32 v2, v0, 2, 2"); a("v_lshl_add_u32 v2, v1, 3, v2"); a("v_lshlrev_b32 v2, 6, v2")
    a("v_bfe_u32 v3, v0, 4, 1"); a("v_xor_b32 v3, v3, v1"); a("v_lshl_add_u32 v2, v3, 5, v2")
    a("v_and_b32 v3, 3, v0"); a("v_lshl_add_u32 v2, v3, 3, v2")
    a("v_and_b32 v3, 8, v0"); a("v_xor_b32 v2, v2, v3")
    a("v_xor_b32 v3, 16, v2"); a("v_add_u32 v3, 256, v3")
    a("s_lshl_b32 s46, s51, 13"); a("s_add_u32 s46, s46, s53")
    a("v_add_u32 v%d, s46, v2" % KVR); a("v_add_u32 v%d, s46, v3" % (KVR + 1)); a("v_add_u32 v%d, s54, v2" % (KVR + 2)); a("v_add_u32 v%d, s54, v3" % (KVR + 3))
    a("v_lshrrev_b32 v1, 2, v0"); a("v_lshrrev_b32 v2, 4, v0"); a("v_xor_b32 v1, v1, v2"); a("v_and_b32 v1, 1, v1")
    a("v_subrev_u32 v1, 1, v1"); a("v_and_b32 v%d, 0x3f803f80, v1" % SEL)
    for i in range(1, 4): a("v_mov_b32 v%d, v%d" % (SEL + i, SEL))
    a("v_and_b32 v1, 15, v0"); a("v_lshlrev_b32 v1, 4, v1"); a("v_lshl_add_u32 v44, v2, 14, v1"); a("v_lshl_add_u32 v46, v2, 12, v1")
    a("v_lshrrev_b32 v1, 4, v0"); a("v_lshlrev_b32 v1, 1, v1"); a("v_and_b32 v2, 7, v0"); a("v_xor_b32 v1, v1, v2"); a("v_lshlrev_b32 v1, 4, v1")
    a("v_lshrrev_b32 v2, 3, v0"); a("v_lshl_add_u32 v1, v2, 11, v1"); a("s_lshl_b32 s46, s3, 15")
    a("v_add_u32 v%d, s46, v1" % VWO); a("v_add_u32 v%d, %d, v%d" % (VWO + 1, 8 * 2048 - 1024, VWO))
    a("s_mul_i32 s46, s51, %d" % (6 * U)); a("s_lshl_b32 s47, s52, 13"); a("s_add_u32 s46, s46, s47"); a("s_add_u32 s46, s46, %d" % (2 * U))
    a("v_add_u32 v45, s46, v9")
    a("s_lshl_b32 s46, s52, 1"); a("s_add_u32 s46, s46, s51"); a("s_lshl_b32 s47, s49, 2"); a("s_add_u32 s46, s46, s47")
    a("s_lshl_b32 s57, s46, 16"); a("s_lshl_b32 s47, s48, 10"); a("s_add_u32 s57, s57, s47"); a("s_add_u32 s57, s57, %d" % WS_P1)
    a("s_lshl_b32 s58, s46, 9"); a("s_lshl_b32 s47, s48, 2"); a("s_add_u32 s58, s58, s47"); a("s_add_u32 s58, s58, %d" % WS_F1)
    for l in ["s_lshl_b32 s47, s49, 4", "s_add_u32 s47, s47, s48", "s_lshl_b32 s16, s47, 7", "s_add_u32 s16, s16, %d" % WS_F1,
              "s_lshr_b32 s17, s47, 2", "s_lshl_b32 s17, s17, 9", "s_and_b32 s46, s48, 3", "s_lshl_b32 s47, s46, 4", "s_add_u32 s17, s17, s47",
              "s_lshl_b32 s47, s3, 2", "s_add_u32 s17, s17, s47", "s_add_u32 s17, s17, %d" % WS_F2,
              "s_xor_b32 s20, s49, 1", "s_lshl_b32 s20, s20, 4", "s_add_u32 s20, s20, s47", "s_add_u32 s20, s20, s46",
              "s_lshl_b32 s20, s20, 7", "s_add_u32 s20, s20, %d" % WS_F2]: a(l)
    for l in ["s_lshl_b32 s47, s49, 4", "s_add_u32 s47, s47, s48", "s_lshl_b32 s46, s3, 8",
           "s_lshl_b32 s18, s47, 14", "s_add_u32 s18, s18, s46", "s_add_u32 s18, s18, %d" % WS_P1,
           "s_lshl_b32 s22, s47, 10", "s_add_u32 s22, s22, s46", "s_add_u32 s22, s22, %d" % WS_P2,
           "s_xor_b32 s24, s49, 1", "s_lshl_b32 s24, s24, 14", "s_add_u32 s24, s24, s55", "s_add_u32 s24, s24, %d" % WS_P2,
           "s_lshl_b32 s21, s3, 6", "s_add_u32 s21, s21, %d" % U]: a(l)
    a.raw("s_waitcnt lgkmcnt(0)")
    a.raw("s_load_dword s44, s[14:15], 0")
    srd_rest()
    if cfg.warm:
        a("s_lshl_b32 s46, s2, 9"); a("s_lshl_b32 s47, s3, 7"); a("s_add_u32 s46, s46, s47"); a("s_add_u32 s46, s46, %d" % WS_F1)
        a("v_mov_b32 v1, 0"); a("s_mov_b64 exec, 1")
        a.raw("buffer_atomic_or v1, v1, s[28:31], s46 offen")
        a("s_mov_b64 exec, -1")
    mktag()

    def xo(n, i):
        t, ks = n >> 1, n & 1
        if t >= NB: return CAP + 16 * (t - NB) + 8 * ks + 4 * i
        return CAP + 16 * (NA - 1) + 8 * ks + 4 * i
    def xf(n, i): return xo(n, i) if i < 2 else XT + 8 * (n & 1) + 4 * (i - 2)
    def wf(n, j): return WF + 16 * (n & 1) + 4 * j
    def reads(n):
        t, ks = n >> 1, n & 1; sl = slot(t)
        def rx(i): return rd128(xf(n, i), XA + 2 * (i >> 1) + ks, 2 * U * sl + 2048 * (i & 1))
        def rw(j): return [trd(wf(n, j) + 2 * tt, WA + (j & 1), 2 * U * sl + U * (j >> 1) + 4096 * ks + 512 * tt) for tt in range(2)]
        return [rx(0)] + rw(0) + [rx(1), rx(2), rx(3)] + rw(1) + rw(2) + rw(3)
    def accK(i, j): return KA + 8 * i + 4 * j
    def accV(i, j): return VA + 8 * i + 4 * j
    def mm(n):
        return [mf16(accK(i, j) if j < 2 else accV(i, j - 2), wf(n, j), xf(n, i), "0" if n == 0 else None) for j in range(4) for i in range(4)]
    extra = {6: wphi_reads(WPK, 17, 0)}
    if cfg.pfwo == "c3b":
        a("v_lshrrev_b32 v3, 3, v0"); a("v_and_b32 v1, 7, v0"); a("v_lshlrev_b32 v1, 7, v1"); a("v_lshl_add_u32 v47, v3, 11, v1")
        a("s_lshr_b32 s46, s2, 3"); a("s_lshl_b32 s46, s46, 16"); a("s_lshl_b32 s47, s3, 14"); a("s_add_u32 s46, s46, s47")
        a("s_bfe_u32 s47, s2, 0x30003"); a("s_lshl_b32 s47, s47, 7"); a("s_sub_u32 s60, s46, s47")
    a.bar()
    if not cfg.cnt: stamp(a, cfg, 1)
    for r in reads(0): a(r)
    TO, TW = WF, WF + 16
    for n in range(30):
        m = mm(n); r = reads(n + 1)
        if n % 2 == 0:
            r = r + extra.get(n, [])
            for i in range(16):
                a(m[i])
                if i < len(r): a(r[i])
        else:
            for i in range(16):
                if i == 4:
                    a.bar()
                    if cfg.hlp > 1 and n == cfg.hlp:
                        a("s_cmp_lg_u32 s61, 0"); a("s_cbranch_scc1 L_h1")
                        a.raw("buffer_load_dword v47, v47, s[4:7], s60 offen")
                        a.label("L_h1")
                    if n == 15 and not cfg.cnt: stamp(a, cfg, 2)
                    if n == 29 and not cfg.cnt: stamp(a, cfg, 3)
                a(m[i])
                if i >= 4: a(r[i - 4])
    po = pack_pair(TO, accK(2, 0), accK(3, 0), accK(2, 1), accK(3, 1))
    pw = pack_pair(TW, accK(0, 0), accK(1, 0), accK(0, 1), accK(1, 1))
    m30 = mm(30); m31 = mm(31); r = reads(31)
    for i in range(12): a(m30[i]); a(r[i])
    for x in [m31[2], m31[3], m31[6], m31[7], m31[0], m31[1], m31[4], m31[5]]: a(x)
    a.bar()
    if cfg.prio1 != cfg.prioA: a("s_setprio %d" % cfg.prio1)
    tail = m30[12:] + m31[8:]
    fill = po + pw
    k = 0
    for i, x in enumerate(tail):
        a(x)
        if i >= 1:
            for _ in range(2):
                if k < len(fill): a(fill[k]); k += 1
    while k < len(fill): a(fill[k]); k += 1
    stamp(a, cfg, 4)
    s0 = softmax(TO, WPK, KA, XT, WF, 10, WF)
    s1 = softmax(TW, WPK, KA + 16, VA + 16, WF + 16, (14, 2), WF + 16)
    vp = [cvt(VA + j, VA + 2 * j, VA + 2 * j + 1) for j in range(16)]
    vw = ["ds_write_b64 v%d, %s offset:%d" % (20 + j + 2 * (i >> 1), v(VA + 4 * i + 2 * j, 2), 1024 * (i & 1)) for i in range(4) for j in range(2)]
    def with_writes(L, OUT, AD):
        out = []
        for l in L:
            out.append(l)
            m_ = re.match(r"v_cvt_pk_bf16_f32 v(\d+),", l)
            if m_:
                k_ = int(m_.group(1)) - OUT
                if 0 <= k_ < 16 and k_ & 1:
                    out.append("ds_write_b64 v%d, %s offset:%d" % (AD + ((k_ & 7) >> 1), v(OUT + k_ - 1, 2), U * (k_ >> 3)))
        return out
    s0w = with_writes(s0[2:], WF, PHT); s1w = with_writes(s1[2:], WF + 16, PHO)
    vpw = []
    for i in range(4):
        for j in range(2):
            n_ = 2 * i + j
            vpw += [vp[2 * n_], vp[2 * n_ + 1], vw[n_]]
    for l in s0[:2] + s1[:2] + vpw[:12]: a(l)
    lead = vpw[12:] + [None] * max(0, cfg.stag - 12)
    y = lead + s1w
    for i in range(max(len(s0w), len(y))):
        if cfg.smst and i in cfg.smst: stamp(a, cfg, 1 + cfg.smst.index(i))
        if i < len(s0w): a(s0w[i])
        if i < len(y) and y[i]: a(y[i])
    stamp(a, cfg, 5)
    if cfg.prio2 != cfg.prio1: a("s_setprio %d" % cfg.prio2)
    a.bar()
    stamp(a, cfg, 6)
    FP, FV, KV, ZZ, KP = 48, 80, 128, 144, 112
    def kvr(ks):
        return [trd(FP + 4 * ks, KVR, 1024 * ks), trd(FP + 4 * ks + 2, KVR + 1, 1024 * ks), trd(FV + 4 * ks, KVR + 2, 1024 * ks), trd(FV + 4 * ks + 2, KVR + 3, 1024 * ks)]
    for ks in range(4):
        for l in kvr(ks): a(l)
    for g in range(4): a("v_mov_b32 v%d, s44" % (KP + 4 * g + 3))
    for g in range(1, 4): a("v_mov_b32 v%d, 0" % (KP + 4 * g + 2))
    a("v_lshlrev_b32 v13, 7, v0")
    a("v_mov_b32 v14, v16")
    for i in range(1, 4): a("v_xor_b32 v%d, %d, v14" % (14 + i, 32 * i))
    for ks in range(8):
        a(mf32(KV, FP + 4 * ks, FV + 4 * ks, "0" if ks == 0 else None))
        if ks + 4 < 8:
            for l in kvr(ks + 4): a(l)
    zl = [mf16(ZZ, SEL, FP + 4 * ks, "0" if ks == 0 else None) for ks in range(8)]
    for l in zl[:3]: a(l)
    for g in (3, 2, 1, 0):
        if g: a(zl[6 - g])
        else: a(zl[6]); a(zl[7])
        for j in range(2): a(cvt(KP + 4 * g + j, KV + 4 * g + 2 * j, KV + 4 * g + 2 * j + 1))
        if g == 0: a(cvt(KP + 2, ZZ, ZZ))
        a("buffer_store_dwordx4 %s, v44, s[28:31], s57 offen offset:%d sc1" % (v(KP + 4 * g, 4), 256 * g))
    a("s_mov_b64 exec, 15")
    a("buffer_atomic_swap v%d, v13, s[28:31], s58 offen" % (KP + 3))
    a("s_mov_b64 exec, -1")
    stamp(a, cfg, 7)
    if cfg.prio3 != cfg.prio2: a("s_setprio %d" % cfg.prio3)
    a.bar()
    QAA, QR = 48, 80
    fl = ["v_and_b32 v1, 1, v0", "v_lshlrev_b32 v1, 4, v1", "v_mov_b32 v2, 0x3f80",
          "v_lshlrev_b32 v1, v1, v2", "v_bfe_u32 v2, v0, 1, 2", "v_mov_b32 v135, s44"]
    for j in range(4):
        fl += ["v_cmp_eq_u32 vcc, %d, v2" % j, "v_cndmask_b32 v%d, 0, v1, vcc" % (SEL + j)]
    fl += ["v_mov_b32 v2, 0",
           "v_and_b32 v3, 15, v0", "v_lshrrev_b32 v4, 5, v0", "v_bfe_u32 v5, v0, 4, 1",
           "v_lshlrev_b32 v3, 4, v3", "v_lshl_add_u32 v3, v4, 10, v3", "v_lshl_add_u32 v3, v5, 3, v3", "v_add_u32 v20, s56, v3",
           "v_and_b32 v3, 3, v0", "v_bfe_u32 v4, v0, 2, 1", "v_and_b32 v5, 8, v0", "v_lshrrev_b32 v6, 4, v0",
           "v_lshl_add_u32 v3, v3, 1, v5", "v_lshl_add_u32 v3, v4, 4, v3", "v_lshl_add_u32 v3, v6, 9, v3", "v_add_u32 v21, s21, v3"]
    evA = {}
    for i, l in enumerate(fl): evA.setdefault(7 + i * 2 // 3, []).append(lambda l=l: a(l))
    def dma_wo(j):
        a("s_add_u32 m0, s56, %d" % ((4 + j) * U)); a("s_mov_b32 s59, %d" % (j * 64 * 2048))
        for i in range(2):
            a.wait(vm=cfg.pace_o)
            a("buffer_load_dwordx4 v%d, s[32:35], s59 offen offset:%d lds" % (VWO + i, 1024 * i), tag="WO")
    nfree = (cfg.c3b - 8) // 8 + cfg.early
    wof = [8, 9, 10, 11, 12, 13, 14, 15][:nfree]
    assert cfg.wo0 <= len(wof)
    woa = wof[:cfg.wo0]
    woa += [j for j in [0, 8, 1, 9, 2, 10, 3, 11, 12, 13, 6, 14, 7, 15] if j not in woa]
    wo3 = [4, 5]
    G = 136
    def p1loads():
        for i in range(4): a.raw("buffer_load_dwordx4 %s, v46, s[28:31], s18 offen offset:%d sc1" % (v(G + 4 * i, 4), 1024 * i))
    def tagcheck():
        a.raw("s_waitcnt vmcnt(0)"); a.vm = []
        a.raw("v_xor_b32 v3, s44, v%d" % (G + 3))
        for g in range(1, 4): a.raw("v_bitop3_b32 v3, v3, v%d, v135 bitop3:0xf6" % (G + 4 * g + 3))
        a.raw("v_cmp_ne_u32 vcc, 0, v3")
    def poll_issue(sreg, mask):
        a.raw("s_mov_b64 exec, 0x%x" % mask); a.raw("v_mov_b32 v12, 0")
        a.raw("buffer_atomic_or v12, v8, s[28:31], %s offen sc0" % sreg)
        a.raw("s_mov_b64 exec, -1")
    def poll(name, sreg, mask, issued):
        a.raw("s_mov_b32 s45, 0"); a.raw("s_mov_b64 exec, 0x%x" % mask)
        if issued: a.raw("s_branch %s_c" % name)
        a.label(name)
        a.raw("v_mov_b32 v12, 0")
        a.raw("buffer_atomic_or v12, v8, s[28:31], %s offen sc0" % sreg)
        if issued: a.label(name + "_c")
        a.raw("s_waitcnt vmcnt(0)"); a.vm = []
        a.raw("v_cmp_ne_u32 vcc, s44, v12")
        spin_tail(a, name)
        a.raw("s_mov_b64 exec, -1")
    def x0():
        stamp(a, cfg, 8)
        poll("L_f1", "s16", 0xffff, True)
        count(2)
        if cfg.cnt: stamp(a, cfg, 4)
        p1loads()
    def x1():
        a.raw("s_mov_b32 s45, 0"); a.raw("s_branch L_p1c")
        a.label("L_p1")
        p1loads()
        a.label("L_p1c")
        tagcheck()
        spin_tail(a, "L_p1")
        stamp(a, cfg, 9)
        for i in range(4): a(mf16(128, SEL, G + 4 * i, "0" if i == 0 else None))
        a(cvt(132, 128, 129)); a(cvt(133, 130, 131))
        a("v_permlane16_swap_b32 v132, v134")
        a("s_mov_b64 exec, 0xffff")
        a("buffer_store_dwordx4 v[132:135], v9, s[28:31], s22 offen sc1")
        a("s_mov_b64 exec, 15")
        a("buffer_atomic_swap v135, v13, s[28:31], s17 offen")
        a("s_mov_b64 exec, -1")
        stamp(a, cfg, 10)
        if cfg.pfwo == "c3b":
            a.raw("buffer_load_dword v1, v47, s[32:35], s60 offen"); a.vm.append((set(), "PF"))
        for j in woa[:cfg.wo0]: dma_wo(j)
    def c3bA():
        a.bar(lg0=False)
    assert 28 <= cfg.p1chk <= 54 and cfg.f1pos <= cfg.p1pos <= cfg.p1chk and cfg.c3bA <= 32 and cfg.c3bA < cfg.p1chk
    for i, p in enumerate(cfg.ast or []): evA.setdefault(p, []).append(lambda i=i: stamp(a, cfg, 1 + i))
    evA.setdefault(cfg.f1pos, []).append(lambda: poll_issue("s16", 0xffff))
    evA.setdefault(cfg.p1pos, []).append(x0)
    evA.setdefault(cfg.p1chk, []).append(x1)
    evA.setdefault(cfg.c3bA, []).append(c3bA)
    qstream(a, [QUNIT[t] for t in range(NB, 16)], lambda s, ks, rt: CAP + 16 * s + 8 * ks + 4 * rt, QAA, QR, 14, 0, evA, True)
    for i in (0, 4, 1, 5, 2, 6, 3, 7): a("ds_write_b128 v45, %s offset:%d" % (v(QAA + 4 * i, 4), 1024 * i))
    stamp(a, cfg, 11)
    poll_issue("s20", 0xffff)
    a.bar()
    w1 = cfg.wo0 + cfg.wo1
    for j in woa[cfg.wo0:w1]: dma_wo(j)
    a("ds_write_b32 v8, v2 offset:%d" % (U + 256))
    stamp(a, cfg, 12)
    poll("L_f2a", "s20", 0xffff, True)
    count(1)
    if cfg.cnt: stamp(a, cfg, 5)
    spin_head(a, "L_p2")
    for g in range(4): a.raw("buffer_load_dwordx4 %s, v9, s[28:31], s24 offen offset:%d sc1" % (v(G + 4 * g, 4), 1024 * g))
    tagcheck()
    spin_tail(a, "L_p2")
    stamp(a, cfg, 13)
    for g in range(4):
        a("ds_write_b64 v20, %s offset:%d" % (v(G + 4 * g, 2), g * 256))
        if g < 2: a("ds_write_b16 v21, v%d offset:%d" % (G + 4 * g + 2, g * 32))
    for j in woa[w1:]: dma_wo(j)
    stamp(a, cfg, 14)
    a.bar()
    for j in wo3: dma_wo(j)
    a("s_mov_b32 s47, 0")
    if cfg.prio3: a("s_setprio 0")

    a.label("L_G2")
    a.lg = []; a.vm = []
    rb2("s48", "s46")
    a("s_lshl_b32 s46, s48, 2"); a("s_add_u32 s46, s46, s3")
    a("s_lshl_b32 s58, s46, 10"); a("s_lshl_b32 s51, s47, 9"); a("s_add_u32 s58, s58, s51")
    if cfg.g2rot: a("s_bfe_u32 s57, s2, 0x30003")
    else: a("s_mov_b32 s57, 0")
    a("v_add_u32 v8, s57, v0"); a("v_and_b32 v8, 7, v8"); a("v_lshlrev_b32 v8, 2, v8")
    a("s_bfe_u32 s51, s2, 0x20003"); a("s_lshl_b32 s51, s51, 7"); a("s_add_u32 s58, s58, s51"); a("s_add_u32 s58, s58, %d" % WS_F3)
    poll_issue("s58", 0xff)
    a("s_lshl_b32 s59, s46, 16"); a("s_lshl_b32 s51, s47, 12"); a("s_add_u32 s59, s59, s51"); a("s_add_u32 s59, s59, %d" % WS_O)
    a("s_lshl_b32 s51, s47, 10"); a("v_add_u32 v10, s51, v9"); a("v_xor_b32 v11, 1024, v10")
    a("v_lshrrev_b32 v1, 5, v0"); a("v_bfe_u32 v2, v0, 2, 3"); a("v_lshl_add_u32 v1, v1, 4, v2"); a("v_lshlrev_b32 v1, 7, v1")
    a("v_bfe_u32 v2, v0, 3, 2"); a("v_lshl_add_u32 v1, v2, 5, v1"); a("v_and_b32 v2, 3, v0"); a("v_lshl_add_u32 v1, v2, 3, v1")
    a("s_lshl_b32 s51, s47, 13"); a("s_add_u32 s51, s51, %d" % (4 * U)); a("v_add_u32 v26, s51, v1")
    a("s_lshl_b32 s51, s3, 1"); a("s_add_u32 s51, s51, s47"); a("s_lshl_b32 s54, s51, 12")
    a("v_add_u32 v18, s54, v9"); a("v_xor_b32 v19, 4096, v18")
    a("s_lshl_b32 s54, s48, 18"); a("s_lshl_b32 s51, s51, 15"); a("s_add_u32 s54, s54, s51")
    cb128("s51", "s46"); a("s_add_u32 s54, s54, s51")
    a("v_and_b32 v1, 15, v0"); a("v_lshlrev_b32 v20, 11, v1"); a("v_bfe_u32 v1, v0, 4, 1"); a("v_lshl_add_u32 v20, v1, 5, v20")
    a("v_lshrrev_b32 v1, 5, v0"); a("v_lshl_add_u32 v20, v1, 4, v20")
    a("s_mov_b32 s24, 0"); a("s_mov_b32 s25, 0xff")
    a("s_cmp_eq_u32 s47, 0")
    a.force(vm=0)
    a("s_cbranch_scc1 L_G2A")
    a("s_mov_b64 exec, 15")
    a.raw("buffer_atomic_swap v3, v4, s[28:31], s52 offen")
    a("s_mov_b64 exec, -1")
    stamp(a, cfg, 14)
    a("s_branch L_G2C")
    a.label("L_G2A")
    stamp(a, cfg, 15)
    a.raw("s_barrier")
    a.label("L_G2C")
    stamp(a, cfg, 16)
    OF, ACC, RING = 128, 48, 80
    D = 7
    WS_ = [14, 22]
    def rdf(f, t):
        if f < 64:
            n, ct = f >> 2, f & 3
            if "nolds" in cfg.xp and ct >= 2: return
            a(trd(RING + 4 * (f % 8) + 2 * t, WS_[(n >> 1) & 1] + ct, (n & 1) * 4096 + t * 1024))
    nld = [0]
    def sel(k):
        nm = "L_s%d" % k
        if cfg.g2st and k in (1, 2, 4): stamp(a, cfg, {1: 1, 2: 3, 4: 5}[k])
        if k:
            a.raw("s_and_b32 s46, s24, s25"); a.raw("s_cbranch_scc1 %s_k" % nm)
            a.raw("s_waitcnt vmcnt(%d)" % nld[0])
        a.raw("s_mov_b32 s45, 0")
        a.label(nm)
        a.raw("v_cmp_eq_u32 vcc, s44, v12")
        a.raw("s_mov_b32 s24, vcc_lo"); a.raw("s_and_b32 s46, s24, s25")
        a.raw("s_cbranch_scc1 %s_k" % nm)
        a.raw("s_mov_b32 s46, s25")
        a.raw("s_add_u32 s45, s45, 1"); a.raw("s_cmp_ge_u32 s45, %d" % SPIN); a.raw("s_cbranch_scc1 %s_k" % nm)
        poll_issue("s58", 0xff)
        a.raw("s_waitcnt vmcnt(0)")
        a.raw("s_branch %s" % nm)
        a.label(nm + "_k")
        a.raw("s_ff1_i32_b32 s27, s46"); a.raw("s_bitset0_b32 s25, s27"); a.raw("s_add_u32 s27, s27, s57"); a.raw("s_and_b32 s27, s27, 7")
        a.raw("s_lshl_b32 s26, s27, 13"); a.raw("s_add_u32 s53, s59, s26"); a.raw("s_lshl_b32 s26, s27, 14")
        if cfg.g2st and k in (1, 2, 4): stamp(a, cfg, {1: 2, 2: 4, 4: 6}[k])
        w = WS_[k & 1]
        a("v_add_u32 v%d, s26, v26" % w)
        for i in range(1, 4): a("v_xor_b32 v%d, %d, v%d" % (w + i, 32 * i, w))
    def repoll(k):
        a.raw("s_and_b32 s46, s24, s25"); a.raw("s_cbranch_scc1 L_r%d" % k)
        poll_issue("s58", 0xff)
        a.label("L_r%d" % k)
        nld[0] = 0
    def old(n, i):
        if n < 16:
            if i == 1 and n & 1 == 0: sel(n >> 1)
            if n == 0 and i == 1: stamp(a, cfg, 17); count(3)
            if not ("noload" in cfg.xp and i == 0):
                a("buffer_load_dwordx4 %s, v%d, s[28:31], s53 offen offset:%d %s" % (v(OF + 8 * n + 4 * i, 4), 10 + i, 2048 * (n & 1), cfg.osc))
                nld[0] += 1
            if 2 * (n & 1) + 1 - i == cfg.rp and n < 14: repoll(n >> 1)
    assert 2 <= cfg.g2_pre <= 4
    for n in range(cfg.g2_pre): old(n, 1); old(n, 0)
    for f in range(D): rdf(f, 0); rdf(f, 1)
    for f in range(64):
        n, ct = f >> 2, f & 3
        for i in (1, 0):
            if not ("nomf" in cfg.xp and ct & 1): a(mf16(ACC + 16 * i + 4 * ct, RING + 4 * (f % 8), OF + 8 * n + 4 * i, "0" if n == 0 else None))
            rdf(f + D, 1 - i)
        if cfg.g2st and f in (0, 16, 32, 48, 56): stamp(a, cfg, {0: 7, 16: 8, 32: 9, 48: 10, 56: 11}[f])
        if ct == 0: old(n + cfg.g2_pre, 1)
        if ct == 2: old(n + cfg.g2_pre, 0)
    stamp(a, cfg, 18)
    for ct in range(4): a("ds_write_b128 v18, %s offset:%d" % (v(ACC + 16 + 4 * ct, 4), 1024 * ct))
    a.bar()
    for ct in range(4): a(rd128(RING + 4 * ct, 19, 1024 * ct))
    for j in range(2):
        for ct in (2 * j, 2 * j + 1):
            for h in range(2): a("v_pk_add_f32 %s, %s, %s" % (v(ACC + 4 * ct + 2 * h, 2), v(ACC + 4 * ct + 2 * h, 2), v(RING + 4 * ct + 2 * h, 2)))
        o = 112 + 4 * j
        for k in range(4): a(cvt(o + k, ACC + 8 * j + 2 * k, ACC + 8 * j + 2 * k + 1))
        a("v_permlane16_swap_b32 v%d, v%d" % (o, o + 2)); a("v_permlane16_swap_b32 v%d, v%d" % (o + 1, o + 3))
        a("buffer_store_dwordx4 %s, v20, s[36:39], s54 offen offset:%d %s" % (v(o, 4), 64 * j, cfg.outsc))
    a("s_or_b32 s46, s2, s3"); a("s_or_b32 s46, s46, s47")
    a("s_cmp_lg_u32 s46, 0"); a("s_cbranch_scc1 L_noep")
    a("v_mov_b32 v1, s44"); a("v_mov_b32 v2, 0"); a("s_mov_b64 exec, 1")
    a("buffer_store_dword v1, v2, s[28:31], 0 offen sc1")
    a("s_mov_b64 exec, -1")
    a.label("L_noep")
    if cfg.amp:
        idx, sh, wg = cfg.amp
        a.raw("s_waitcnt vmcnt(0)")
        stamp(a, cfg, 19)
        a.raw("s_waitcnt lgkmcnt(0)")
        a("s_or_b32 s46, s3, s47"); a("s_cmp_lg_u32 s46, 0"); a("s_cbranch_scc1 L_end")
        a("s_cmp_lg_u32 s2, %d" % wg); a("s_cbranch_scc1 L_end")
        a("s_sub_u32 s46, s%d, s%d" % (ST0 + 2 * idx, ST0)); a("s_lshl_b32 s46, s46, %d" % sh)
        a("s_min_u32 s46, s46, 40000"); a("s_mov_b32 s45, 0")
        a.label("L_amp")
        a.raw("s_memrealtime s[50:51]"); a.raw("s_waitcnt lgkmcnt(0)")
        a("s_sub_u32 s50, s50, s%d" % (ST0 + 38)); a("s_cmp_ge_u32 s50, s46"); a("s_cbranch_scc1 L_end")
        a("s_add_u32 s45, s45, 1"); a("s_cmp_lt_u32 s45, 100000"); a("s_cbranch_scc1 L_amp")
    elif cfg.stamps:
        a.raw("s_waitcnt vmcnt(0)")
        stamp(a, cfg, 19)
        a.raw("s_waitcnt lgkmcnt(0)")
        a("s_cmp_lg_u32 s3, 0"); a("s_cbranch_scc1 L_end")
        a("s_mul_i32 s60, s2, %d" % (NST * 8)); a("s_lshl_b32 s61, s47, 16"); a("s_add_u32 s60, s60, s61"); a("s_add_u32 s60, s60, %d" % WS_ST)
        a("v_mov_b32 v2, s60"); a("s_mov_b64 exec, 1")
        for i in range(NST):
            a("v_mov_b32 v4, s%d" % (ST0 + 2 * i)); a("v_mov_b32 v5, s%d" % (ST0 + 1 + 2 * i))
            a.raw("buffer_store_dwordx2 v[4:5], v2, s[28:31], 0 offen offset:%d" % (8 * i)); a.raw("s_waitcnt vmcnt(0)")
    a.label("L_end")
    a.raw("s_endpgm")
    return a

def build(cfg, path):
    a = gen(cfg)
    lines = hazard.fix(a.lines, verbose=False)
    for p in hazard.check_backedges(lines): print("BACKEDGE HAZARD:", p)
    out = HEADER + "; @launch grid=(256,1,1) block=(512,1,1) lds=163840\n"
    out += '.amdgcn_target "amdgcn-amd-amdhsa--gfx950"\n.text\n' + "\n".join(lines) + "\n"
    out += '.section .rodata,"a"\n.p2align 6\n' + kd(NAME, 256, 102 if cfg.stamps else 64, 256)
    open(path, "w").write(out)

def mk(path, **kw):
    c = Cfg()
    for k, x in kw.items():
        assert hasattr(c, k), k
        setattr(c, k, x)
    build(c, path)

if __name__ == "__main__":
    mk("v8.s")
    B = dict(stamps=True)
    mk("v8a_st.s", **B)
    mk("v8b_st.s", kx=True, **B)
    mk("v8c_st.s", g2_pre=4, **B)
```

```python
import sys, re
from asmlib import *
import hazard
from gen3 import (E, mf16, mf32, trd, rd128, cvt, pack_pair, softmax, ph_addr, wlane, xlane, wphi_lane,
                  wphi_reads, spin_head, spin_tail, stamp, NAME, LOG2E, TAGC, NST, ST0, U, WS_ST, SPIN)

WS_P2  = 0x40000
WS_F1  = 0x80000
WS_F2  = 0x88000
WS_F3  = 0x90000
WS_P1  = 0x400000
WS_O   = 0x800000
TMASK = 0xBFFFBFFF

class Cfg:
    stamps = False
    cnt = False
    pfwo = 'c1'
    smst = None
    pace_m = None
    pace_t0 = 2
    pace_q = None
    pace_p = None
    pace_o = None
    warm = True
    f1pos = 24
    hlp = 1
    hpx = 3
    bst = None
    ast = None
    pfpat = 'row'
    prest = -1
    amp = None
    scramble = False
    outsc = "sc0 sc1"
    rot = "r4b"
    prioA = 0
    prio1 = 1
    prio2 = 1
    prio3 = 1
    early = 0
    c2w = 4
    c3a = 24
    g2_pre = 3
    stag = 40
    wo1 = 0
    c5b = True
    p1pos = 31
    touch = False
    q14 = 4
    q15 = 2
    qlate = 0
    c3bA = 30
    c3b = 44
    c4o = 3
    p1chk = 40
    wo0 = 4
    kx = True
    g2dyn = True
    rp = 0
    pst = False
    cpf = 16
    lay = True
    tch = {16: [5, 1, 2]}
    cptop = True
    xp = ''
    g2rot = True
    osc = 'sc1'
    g2st = False

def slot(t): return (t + 2) % 3

def qstream(a, units, xreg, ACC, RING, WR, base, events, first_c):
    D = 7
    frs = [(s, ks, ct) for s in range(len(units)) for ks in range(2) for ct in range(4)]
    st = {"base": base}
    def read(f, t):
        if t == 0:
            for ev in events.get(f, []): ev()
        if f >= len(frs): return
        s, ks, ct = frs[f]
        off = units[s] * U - st["base"]
        if off < 0 or off + U > 65536:
            nb = units[s] * U
            d = nb - st["base"]
            for i in range(4):
                a(("v_add_u32 v%d, %d, v%d" % (WR + i, d, WR + i)) if d > 0 else ("v_subrev_u32 v%d, %d, v%d" % (WR + i, -d, WR + i)))
            st["base"] = nb; off = 0
        a(trd(RING + 4 * (f % 8) + 2 * t, WR + ct, off + ks * 4096 + t * 512))
    for f in range(D): read(f, 0); read(f, 1)
    for f, (s, ks, ct) in enumerate(frs):
        for rt in range(2):
            a(mf16(ACC + 16 * rt + 4 * ct, RING + 4 * (f % 8), xreg(s, ks, rt), "0" if (first_c and f < 4) else None))
            read(f + D, rt)

def gen(cfg):
    a = E()
    NB = 10; NA = 6
    kernel_begin(a, NAME)
    a("s_cmp_ge_u32 s2, 256"); a("s_cbranch_scc1 L_end")
    a("s_load_dwordx8 s[4:11], s[0:1], 0")
    a("s_load_dwordx2 s[12:13], s[0:1], 32")
    a("s_load_dwordx2 s[14:15], s[0:1], 48")
    stamp(a, cfg, 0)
    if cfg.scramble:
        a("s_lshr_b32 s46, s2, 3"); a("s_lshr_b32 s47, s2, 5"); a("s_xor_b32 s46, s46, s47"); a("s_and_b32 s46, s46, 7"); a("s_xor_b32 s2, s2, s46")
    a("v_lshrrev_b32 v1, 6, v0"); a("v_and_b32 v0, 63, v0")
    a("s_and_b32 s51, s2, 1"); a("v_readfirstlane_b32 s3, v1")
    def codepf():
        a("s_cmp_lg_u32 s3, 7"); a("s_cbranch_scc1 L_cp")
        a("s_getpc_b64 s[24:25]")
        a.label("L_pc")
        a("s_sub_u32 s24, s24, L_pc-%s" % NAME); a("s_subb_u32 s25, s25, 0")
        a("s_mov_b32 s26, %s-%s" % ("L_last" if cfg.lay else "L_end", NAME)); a("s_mov_b32 s27, 0x20000")
        a("s_lshr_b32 s46, s2, 3"); a("s_mul_i32 s46, s46, %d" % (64 * cfg.cpf))
        a("v_lshlrev_b32 v1, 6, v0"); a("v_add_u32 v1, s46, v1")
        a("s_mov_b64 exec, 0x%x" % ((1 << cfg.cpf) - 1))
        a.raw("buffer_load_dword v47, v1, s[24:27], 0 offen")
        a("s_mov_b64 exec, -1")
        a.label("L_cp")
    if cfg.cpf and cfg.cptop: codepf()
    a("s_bfe_u32 s52, s2, 0x20001")
    a("s_bfe_u32 s53, s2, 0x30003")
    a("s_lshr_b32 s54, s2, 6")
    if cfg.hpx: a("s_xor_b32 s54, s54, %d" % cfg.hpx)
    a("s_lshl_b32 s48, s51, 3"); a("s_add_u32 s48, s48, s53")
    a("s_lshl_b32 s49, s52, 2"); a("s_add_u32 s49, s49, s54")
    a("s_mov_b32 s19, 0x20000"); a("s_mov_b32 s23, 0x20000")
    a("s_cmp_ge_u32 s3, 4"); a("s_cbranch_scc1 L_A")

    def cb128(d, t):
        a("s_bfe_u32 %s, s2, 0x30003" % d); a("s_bfe_u32 %s, s2, 0x10002" % t); a("s_lshl_b32 %s, %s, 3" % (t, t))
        a("s_add_u32 %s, %s, %s" % (d, d, t)); a("s_lshl_b32 %s, %s, 7" % (d, d))
    def rb2(d, t):
        a("s_and_b32 %s, s2, 3" % d); a("s_lshl_b32 %s, %s, 2" % (d, d)); a("s_lshr_b32 %s, s2, 6" % t); a("s_add_u32 %s, %s, %s" % (d, d, t))
    def srd_rest():
        a("s_mov_b32 s31, 0x20000"); a("s_mov_b32 s35, 0x20000"); a("s_mov_b32 s39, 0x20000")
        a("s_mov_b32 s28, s14"); a("s_mov_b32 s29, s15"); a("s_mov_b32 s30, 0x10000000")
        cb128("s46", "s47")
        a("s_add_u32 s32, s10, s46"); a("s_addc_u32 s33, s11, 0"); a("s_sub_u32 s34, %d, s46" % (1024 * 2048))
        a("s_mov_b32 s36, s12"); a("s_mov_b32 s37, s13"); a("s_mov_b32 s38, %d" % (2048 * 2048))
        a("s_mov_b32 s40, 0x%x" % LOG2E); a("s_mov_b32 s41, 0x%x" % LOG2E)
        a("s_mov_b32 s42, 0x%x" % (LOG2E | 0x80000000)); a("s_mov_b32 s43, 0x%x" % (LOG2E | 0x80000000))
    def mktag():
        a.raw("s_waitcnt lgkmcnt(0)")
        a("s_add_u32 s44, s44, 0x%x" % TAGC); a("s_and_b32 s44, s44, 0x%x" % TMASK)
    def count(idx):
        if cfg.cnt: a.raw("s_mov_b32 s%d, s45" % (ST0 + 2 * idx)); a.raw("s_mov_b32 s%d, 0" % (ST0 + 2 * idx + 1))

    QUNIT = {0: 12, 1: 13, 2: 14, 3: 15, 4: 16, 5: 17, 6: 18, 7: 19, 8: 10, 9: 11, 10: 0, 11: 1, 12: 4, 13: 5, 14: 6, 15: 7}

    XR, WR, VQ, VX, VW, BWP = 10, 10, 14, 16, 20, 16
    BACC, BRING, BCAP = 32, 64, 96
    if cfg.rot == "r4":
        a("s_add_u32 s50, s53, s54"); a("s_and_b32 s50, s50, 1"); a("s_lshl_b32 s50, s50, 1")
        a("s_add_u32 s46, s51, s52"); a("s_and_b32 s46, s46, 1"); a("s_add_u32 s50, s50, s46"); a("s_lshl_b32 s50, s50, 2")
    elif cfg.rot == "r4b":
        a("s_add_u32 s50, s51, s52"); a("s_and_b32 s50, s50, 1"); a("s_lshl_b32 s50, s50, 1")
        a("s_add_u32 s46, s53, s54"); a("s_and_b32 s46, s46, 1"); a("s_add_u32 s50, s50, s46"); a("s_lshl_b32 s50, s50, 2")
    elif isinstance(cfg.rot, tuple):
        first = True
        for c, r in zip(cfg.rot, ("s51", "s52", "s53", "s54")):
            if c:
                a("s_mul_i32 %s, %s, %d" % ("s50" if first else "s46", r, c))
                if not first: a("s_add_u32 s50, s50, s46")
                first = False
        a("s_and_b32 s50, s50, 15")
    else:
        a("s_mov_b32 s50, 0")
    a("s_lshl_b32 s55, s3, 12"); a("s_lshl_b32 s56, s3, 11")
    a("v_lshrrev_b32 v3, 3, v0"); a("v_and_b32 v4, 7, v0")
    a("v_lshrrev_b32 v5, 4, v0")
    a("v_xor_b32 v6, v5, v4"); a("v_lshlrev_b32 v6, 4, v6")
    a("s_lshl_b32 s46, s3, 16")
    a("v_lshl_add_u32 v6, v3, 11, v6"); a("v_add_u32 v%d, s46, v6" % VX)
    a("v_xor_b32 v6, 64, v%d" % VX)
    a("v_add_u32 v%d, %d, v6" % (VX + 1, 8 * 2048 - 1024))
    a("v_add_u32 v%d, %d, v%d" % (VX + 2, 16 * 2048 - 2048, VX))
    a("v_add_u32 v%d, %d, v6" % (VX + 3, 24 * 2048 - 3072))
    a("v_and_b32 v5, 1, v5"); a("v_lshlrev_b32 v5, 1, v5"); a("v_xor_b32 v5, v5, v4"); a("v_lshlrev_b32 v5, 4, v5")
    a("v_mul_u32_u24 v6, 6144, v3")
    a("s_mul_i32 s46, s3, %d" % (16 * 6144))
    a("s_and_b32 s47, s49, 1"); a("s_lshl_b32 s47, s47, 7")
    a("s_add_u32 s57, s46, s47"); a("s_add_u32 s57, s57, 2048")
    a("s_xor_b32 s47, s47, 128"); a("s_add_u32 s46, s46, s47")
    a("v_add3_u32 v%d, v5, v6, s57" % VW)
    a("v_add3_u32 v%d, v5, v6, s46" % VQ)
    a("v_xor_b32 v7, 64, v%d" % VW); a("v_add_u32 v%d, %d, v7" % (VW + 1, 8 * 6144 - 1024))
    a("v_add_u32 v%d, 2048, v%d" % (VW + 2, VW)); a("v_add_u32 v%d, 2048, v%d" % (VW + 3, VW + 1))
    a("s_lshl_b32 s46, s48, 18"); a("s_mov_b32 s18, %d" % (128 * 2048))
    a("s_lshr_b32 s47, s49, 1"); a("s_lshl_b32 s47, s47, 8")
    a("s_sub_u32 s22, %d, s47" % (1024 * 6144))
    a("s_lshl_b32 s58, s50, 7"); a("s_mul_i32 s59, s50, %d" % (64 * 6144))
    a("s_add_u32 m0, s55, %d" % (2 * U * slot(0)))
    if cfg.cnt: stamp(a, cfg, 4)
    if cfg.pst: stamp(a, cfg, 15)
    a.raw("s_waitcnt lgkmcnt(0)")
    if cfg.cnt: stamp(a, cfg, 6)
    if cfg.pst: stamp(a, cfg, 3)
    a("s_add_u32 s16, s4, s46"); a("s_addc_u32 s17, s5, 0")
    a("s_add_u32 s20, s6, s47"); a("s_addc_u32 s21, s7, 0")

    def kst(t):
        if cfg.kx: a("s_xor_b32 s57, s50, %d" % t)
        else: a("s_add_u32 s57, s50, %d" % t); a("s_and_b32 s57, s57, 15")
    def dma_stage(t, first=False):
        tag = "S%d" % t
        if not first:
            kst(t); a("s_add_u32 m0, s55, %d" % (2 * U * slot(t))); a("s_lshl_b32 s58, s57, 7"); a("s_mul_i32 s59, s57, %d" % (64 * 6144))
        pm = cfg.pace_m if t >= cfg.pace_t0 else None
        for j in range(4):
            a.wait(vm=pm)
            a("buffer_load_dwordx4 v%d, s[16:19], s58 offen offset:%d lds" % (VX + j, 1024 * j), tag=tag)
        for k in range(2):
            a("s_add_u32 m0, s56, %d" % ((6 + 2 * slot(t) + k) * U))
            for i in range(2):
                a.wait(vm=pm)
                a("buffer_load_dwordx4 v%d, s[20:23], s59 offen offset:%d lds" % (VW + 2 * k + i, 1024 * i), tag=tag)
    def dma_q(t):
        kst(t); a("s_add_u32 m0, s56, %d" % (QUNIT[t] * U)); a("s_mul_i32 s59, s57, %d" % (64 * 6144))
        for i in range(2):
            a.wait(vm=cfg.pace_q)
            a("buffer_load_dwordx4 v%d, s[20:23], s59 offen offset:%d lds" % (VQ + i, 1024 * i), tag="Q%d" % t)

    dma_stage(0, True)
    if cfg.pst: stamp(a, cfg, 4)
    a.raw("s_load_dword s44, s[14:15], 0")
    dma_stage(1)
    stamp(a, cfg, 1)
    a("v_xor_b32 v7, 64, v%d" % VQ); a("v_add_u32 v%d, %d, v7" % (VQ + 1, 8 * 6144 - 1024))
    srd_rest()
    a("s_mov_b32 s10, 65536"); a("s_mov_b32 s11, 0x20000")
    xlane(a, XR, 1, 2)
    a("v_add_u32 v%d, s55, v%d" % (XR, XR)); a("v_add_u32 v%d, s55, v%d" % (XR + 1, XR + 1))
    a("v_lshlrev_b32 v9, 4, v0")
    wphi_lane(a, 8, 1, 2)
    a("s_and_b32 s46, s49, 1"); a("s_lshl_b32 s46, s46, 12"); a("s_xor_b32 s46, s46, 4096"); a("s_add_u32 s46, s46, %d" % (19 * U))
    a("v_add_u32 v8, s46, v8")
    mktag()
    if cfg.pst: stamp(a, cfg, 5)
    def bx(s, ks, rt): return BCAP + 16 * s + 8 * ks + 4 * rt
    qorder = [0, 1, 2, 3, 10, 11, 4, 5, 6, 7]
    def pfw():
        a.wait(vm=cfg.pace_p)
        a.raw("buffer_load_dword v1, v3, s[32:35], s46 offen"); a.vm.append((set(), "PF"))
    def pfs(i0, i1):
        for i in range(i0, i1): a.raw("s_load_dwordx2 s[26:27], s[24:25], 0x%x" % ((i >> 2) * 2048 + (i & 3) * 256 + 124))
    def touch(t):
        if cfg.tch and t in cfg.tch:
            a.raw("s_mov_b64 exec, 0")
            for k in cfg.tch[t]: a.raw("s_call_b64 s[60:61], L_pad%d" % k)
            a.raw("s_mov_b64 exec, -1")
    for t in range(16):
        a.bar(["S%d" % t])
        if t == 0: stamp(a, cfg, 2)
        if t == 4 and not cfg.cnt and not cfg.pst: stamp(a, cfg, 3)
        if t == 8 and not cfg.cnt and not cfg.pst: stamp(a, cfg, 4)
        if t == 15 and not cfg.pst: stamp(a, cfg, 5)
        if t < NB:
            for ks in range(2):
                for rt in range(2): a(rd128(bx(t, ks, rt), XR + ks, 2 * U * slot(t) + 2048 * rt))
        if t == 0:
            a("s_lshr_b32 s46, s49, 1"); a("s_lshl_b32 s46, s46, 13"); a("s_add_u32 s46, s46, s56")
            a("s_add_u32 m0, s56, %d" % (19 * U))
            for i in range(2): a("buffer_load_dwordx4 v9, s[8:11], s46 offen offset:%d lds" % (1024 * i), tag="WP")
        if t + 2 < 16: dma_stage(t + 2)
        touch(t)
        if cfg.tch and t == 0:
            a.raw("s_branch L_nret"); a.label("L_ret"); a.raw("s_setpc_b64 s[60:61]"); a.label("L_nret")
        if t == 13:
            wlane(a, WR, 3, 4)
            a("v_add_u32 v%d, %d, v%d" % (WR, QUNIT[0] * U, WR))
            for i in range(1, 4): a("v_xor_b32 v%d, %d, v%d" % (WR + i, 32 * i, WR))
            a("s_lshr_b32 s46, s3, 1"); a("s_mul_i32 s46, s46, %d" % (6 * U)); a("s_and_b32 s47, s3, 1"); a("s_lshl_b32 s47, s47, 13")
            a("s_add_u32 s46, s46, s47"); a("s_add_u32 s46, s46, %d" % (2 * U)); a("v_add_u32 v5, s46, v9")
            a("v_and_b32 v3, 15, v0"); a("v_lshlrev_b32 v6, 4, v3"); a("v_bfe_u32 v3, v0, 4, 1"); a("v_lshl_add_u32 v6, v3, 10, v6")
            a("v_lshrrev_b32 v3, 5, v0"); a("v_lshl_add_u32 v6, v3, 8, v6")
            a("v_lshrrev_b32 v4, 2, v0"); a("v_lshrrev_b32 v7, 4, v0"); a("v_xor_b32 v4, v4, v7"); a("v_and_b32 v4, 1, v4")
            a("v_lshlrev_b32 v3, 4, v3"); a("v_lshl_add_u32 v7, v4, 8, v3"); a("v_add_u32 v7, %d, v7" % U)
            a("s_lshl_b32 s46, s48, 2"); a("s_add_u32 s46, s46, s3"); a("s_xor_b32 s47, s49, 1")
            a("s_lshl_b32 s51, s46, 16"); a("s_lshl_b32 s54, s47, 12"); a("s_add_u32 s51, s51, s54"); a("s_add_u32 s51, s51, %d" % WS_O)
            a("s_lshl_b32 s52, s46, 10"); a("s_and_b32 s54, s47, 1"); a("s_lshl_b32 s54, s54, 9"); a("s_add_u32 s52, s52, s54")
            a("s_lshr_b32 s54, s47, 1"); a("s_lshl_b32 s54, s54, 2"); a("s_add_u32 s52, s52, s54"); a("s_add_u32 s52, s52, %d" % WS_F3)
            a("s_mov_b32 s53, 0x358637bd")
            for l in wphi_reads(BWP, 8, 0) + wphi_reads(BWP + 8, 8, 2048): a(l)
            if cfg.pfpat == "col":
                a("v_lshlrev_b32 v3, 11, v0"); a("s_lshr_b32 s46, s2, 6"); a("s_lshl_b32 s46, s46, 19"); a("s_lshl_b32 s47, s3, 17"); a("s_add_u32 s46, s46, s47")
            else:
                a("v_lshrrev_b32 v3, 3, v0"); a("v_and_b32 v4, 7, v0"); a("v_lshlrev_b32 v4, 7, v4"); a("v_lshl_add_u32 v3, v3, 11, v4")
                a("s_lshr_b32 s46, s2, 3"); a("s_lshl_b32 s46, s46, 16"); a("s_lshl_b32 s47, s3, 14"); a("s_add_u32 s46, s46, s47")
                a("s_bfe_u32 s47, s2, 0x30003"); a("s_lshl_b32 s47, s47, 7"); a("s_sub_u32 s46, s46, s47")
                if cfg.pfwo == "scalar":
                    a("s_add_u32 s24, s32, s46"); a("s_addc_u32 s25, s33, 0")
        if t == 14:
            if cfg.pfwo == "t14": pfw()
            if cfg.pfwo == "scalar": pfs(0, 12)
            for q in qorder[:cfg.q14]: dma_q(q)
        if t == 15:
            if cfg.pfwo == "t15": pfw()
            for q in qorder[cfg.q14:cfg.q14 + cfg.q15]: dma_q(q)
    a.bar(["Q%d" % q for q in range(cfg.early)])
    if not cfg.cnt: stamp(a, cfg, 6)
    if cfg.pfwo == "c1a": pfw()
    if cfg.pfwo == "scalar": pfs(12, 22)
    rest = [q for q in (10, 11, 12, 13, 0, 1, 2, 3, 4, 5, 6, 7, 8, 9) if q not in qorder[:cfg.q14 + cfg.q15]]
    late = rest[len(rest) - cfg.qlate:]
    for q in rest[:len(rest) - cfg.qlate]: dma_q(q)
    if cfg.pfwo == "c1": pfw()
    if cfg.pfwo == "scalar": pfs(22, 32)
    touch(16)
    if cfg.early:
        qstream(a, [QUNIT[t] for t in range(cfg.early)], bx, BACC, BRING, WR, QUNIT[0] * U, {}, True)
    a.bar(["Q%d" % q for q in range(cfg.early + cfg.c2w)])
    stamp(a, cfg, 7)
    ev = {}
    def add(pos, f): ev.setdefault(pos, []).append(f)
    for i, q in enumerate(late): add(7 + 2 * i, lambda q=q: dma_q(q))
    assert cfg.c3b <= 8 * (min(late + [10]) - cfg.early)
    def c3a():
        a.bar(["Q%d" % q for q in range(16) if q not in late], lg0=False); stamp(a, cfg, 8)
        for q in (14, 15): dma_q(q)
        if cfg.pfwo == "c3a":
            a.raw("buffer_load_dword v1, v3, s[32:35], s46 offen"); a.vm.append((set(), "PF"))
    assert cfg.c3a <= 8 * cfg.c2w
    add(cfg.c3a, c3a)
    QPR = BCAP
    def c3b():
        a.bar(["Q14", "Q15"], lg0=False); stamp(a, cfg, 9)
    add(cfg.c3b, c3b)
    for i, p in enumerate(cfg.bst or []): add(p, lambda i=i: stamp(a, cfg, 1 + i))
    def c4():
        a.bar()
        for i in range(8): a(rd128(QPR + 4 * i, 5, 1024 * i))
    add(8 * (NB - cfg.early) + cfg.c4o, c4)
    qstream(a, [QUNIT[t] for t in range(cfg.early, NB)], lambda s, ks, rt: bx(s + cfg.early, ks, rt), BACC, BRING, WR, QUNIT[0] * U, ev, cfg.early == 0)
    stamp(a, cfg, 10)
    for ct in range(4):
        for rt in range(2):
            for h in range(2):
                r = 16 * rt + 4 * ct + 2 * h
                a("v_pk_add_f32 %s, %s, %s" % (v(BACC + r, 2), v(BACC + r, 2), v(QPR + r, 2)))
    PQ = 96; QA = BACC
    l0 = pack_pair(64, QA, QA + 16, QA + 4, QA + 20) + softmax(64, BWP, 160, 176, 224, 80, PQ)
    l1 = pack_pair(72, QA + 8, QA + 24, QA + 12, QA + 28) + softmax(72, BWP + 8, 192, 208, 240, 84, PQ + 16)
    for x, y in zip(l0, l1): a(x); a(y)
    a("v_mov_b32 v3, s44"); a("v_lshlrev_b32 v4, 7, v0")
    stamp(a, cfg, 11)
    a.bar()
    stamp(a, cfg, 12)
    KF, ZF, NUM, DEN, OP = 160, 192, 32, 64, 128
    for e in range(2):
        for i in range(4): a(rd128(ZF + 16 * e + 4 * i, 7, 128 * e + 32 * i))
        for i in range(4): a(rd128(KF + 16 * e + 4 * i, 9, 4096 * e + 1024 * i))
    for e in range(2):
        for i in range(4): a(mf16(DEN + 4 * e, ZF + 16 * e + 4 * i, PQ + 16 * e + 4 * i, "0" if i == 0 else None))
        for i in range(4): a(mf32(NUM + 16 * e, KF + 16 * e + 4 * i, PQ + 16 * e + 4 * i, "0" if i == 0 else None))
    for e in range(2):
        d = DEN + 4 * e; nu = NUM + 16 * e
        a("v_add_f32 v%d, s53, v%d" % (d, d)); a("v_rcp_f32 v%d, v%d" % (d, d))
        for m_ in range(2):
            for j in range(4 * m_, 4 * m_ + 4): a("v_pk_mul_f32 %s, %s, %s op_sel_hi:[1,0]" % (v(nu + 2 * j, 2), v(nu + 2 * j, 2), v(d, 2)))
            for j in range(4 * m_, 4 * m_ + 4): a(cvt(OP + 8 * e + j, nu + 2 * j, nu + 2 * j + 1))
            a("buffer_store_dwordx4 %s, v6, s[28:31], s51 offen offset:%d sc1" % (v(OP + 8 * e + 4 * m_, 4), 2048 * e + 512 * m_))
    a.bar()
    stamp(a, cfg, 13)
    a("s_mov_b32 s47, 1")
    a("s_branch L_G2")
    a.lg = []; a.vm = []

    a.label("L_A")
    XA, WA, WPK = 10, 14, 24
    KVR, SEL, PHO, PHT, VWO = 32, 36, 4, 40, 18
    KA, VA, XT, WF, CAP = 48, 80, 112, 128, 160
    if cfg.prioA == "c3":
        a("s_and_b32 s46, s49, 7"); a("s_cmp_eq_u32 s46, 3"); a("s_cbranch_scc1 L_np"); a("s_setprio 1"); a.label("L_np")
    elif cfg.prioA == "fol":
        a("s_and_b32 s46, s49, 7"); a("s_cmp_eq_u32 s46, 3"); a("s_cbranch_scc1 L_np")
        a("s_add_u32 s46, s53, s54"); a("s_bitcmp1_b32 s46, 0"); a("s_cbranch_scc1 L_np"); a("s_setprio 1"); a.label("L_np")
    elif cfg.prioA: a("s_setprio %d" % cfg.prioA)
    if cfg.cpf and not cfg.cptop: codepf()
    if cfg.pst: stamp(a, cfg, 2)
    a("s_sub_u32 s3, s3, 4")
    if cfg.hlp:
        assert cfg.rot == "r4b"
        a("s_and_b32 s61, s52, 1"); a("s_lshr_b32 s46, s54, 1"); a("s_or_b32 s61, s61, s46"); a("s_lshr_b32 s46, s3, 1"); a("s_or_b32 s61, s61, s46")
        a("s_add_u32 s46, s51, s52"); a("s_add_u32 s46, s46, s3"); a("s_and_b32 s46, s46, 1"); a("s_lshl_b32 s46, s46, 9")
        a("s_lshl_b32 s47, s54, 5"); a("s_add_u32 s46, s46, s47"); a("s_lshl_b32 s47, s53, 2"); a("s_add_u32 s46, s46, s47")
        a("v_lshrrev_b32 v1, 3, v0"); a("v_bfe_u32 v2, v0, 1, 2"); a("v_lshl_add_u32 v1, v1, 6, v2"); a("v_add_u32 v1, s46, v1")
        a("v_mul_u32_u24 v1, 6144, v1"); a("v_and_b32 v2, 1, v0"); a("v_lshl_add_u32 v47, v2, 11, v1")
        a("s_lshl_b32 s60, s52, 9"); a("s_add_u32 s60, s60, %d" % (2048 + 384))
        a.raw("s_waitcnt lgkmcnt(0)")
        a("s_mov_b32 s4, s6"); a("s_mov_b32 s5, s7"); a("s_mov_b32 s6, %d" % (1024 * 6144)); a("s_mov_b32 s7, 0x20000")
        if cfg.hlp == 1:
            a("s_cmp_lg_u32 s61, 0"); a("s_cbranch_scc1 L_h0")
        else:
            a("s_or_b32 s46, s61, s3"); a("s_cmp_lg_u32 s46, 0"); a("s_cbranch_scc1 L_h0")
        a.raw("buffer_load_dword v47, v47, s[4:7], s60 offen")
        a.label("L_h0")
        a("s_xor_b32 s46, s3, 1"); a("s_or_b32 s61, s61, s46")
    a("s_lshl_b32 s55, s3, 12"); a("s_lshl_b32 s56, s3, 11")
    a("s_and_b32 s52, s3, 1"); a("s_lshr_b32 s51, s3, 1")
    xlane(a, XA, 1, 2)
    a("s_xor_b32 s46, s55, 4096")
    a("v_add_u32 v%d, s46, v%d" % (XA + 2, XA)); a("v_add_u32 v%d, s46, v%d" % (XA + 3, XA + 1))
    a("v_add_u32 v%d, s55, v%d" % (XA, XA)); a("v_add_u32 v%d, s55, v%d" % (XA + 1, XA + 1))
    wlane(a, 16, 1, 2)
    a("s_lshl_b32 s46, s52, 6"); a("v_xor_b32 v%d, s46, v16" % WA)
    a("v_add_u32 v%d, %d, v%d" % (WA, 6 * U, WA)); a("v_xor_b32 v%d, 32, v%d" % (WA + 1, WA))
    wphi_lane(a, 17, 1, 2)
    a("s_and_b32 s46, s49, 1"); a("s_lshl_b32 s46, s46, 12")
    a("s_lshl_b32 s47, s52, 11"); a("s_add_u32 s46, s46, s47"); a("s_add_u32 s46, s46, %d" % (19 * U))
    a("v_add_u32 v17, s46, v17")
    a("v_lshlrev_b32 v9, 4, v0"); a("v_lshlrev_b32 v8, 2, v0")
    a("v_and_b32 v1, 15, v0"); a("v_lshlrev_b32 v1, 6, v1")
    a("v_lshrrev_b32 v2, 5, v0"); a("v_bfe_u32 v3, v0, 2, 2"); a("v_xor_b32 v2, v2, v3"); a("v_lshl_add_u32 v1, v2, 4, v1")
    a("v_lshrrev_b32 v2, 3, v0"); a("v_xor_b32 v2, v2, v0"); a("v_bfe_u32 v2, v2, 1, 1"); a("v_lshl_add_u32 v1, v2, 3, v1")
    a("s_lshl_b32 s54, s52, 13"); a("s_add_u32 s54, s54, %d" % (6 * U))
    a("s_add_u32 s46, s54, s56")
    a("v_add_u32 v20, s46, v1"); a("v_xor_b32 v21, 32, v20"); a("v_xor_b32 v22, 2048, v20"); a("v_xor_b32 v23, 2048, v21")
    a("s_mul_i32 s53, s52, %d" % (6 * U)); a("s_add_u32 s53, s53, %d" % (2 * U))
    a("s_add_u32 s46, s53, s56")
    ph_addr(a, PHO, 1, 2, "s46")
    a("v_and_b32 v1, 2, v0"); a("v_lshlrev_b32 v1, 2, v1")
    for g in range(4): a("v_xor_b32 v%d, v1, v%d" % (PHO + g, PHO + g))
    for g in range(4): a("v_xor_b32 v%d, 2048, v%d" % (PHT + g, PHO + g))
    a("v_lshrrev_b32 v1, 5, v0"); a("v_bfe_u32 v2, v0, 2, 2"); a("v_lshl_add_u32 v2, v1, 3, v2"); a("v_lshlrev_b32 v2, 6, v2")
    a("v_bfe_u32 v3, v0, 4, 1"); a("v_xor_b32 v3, v3, v1"); a("v_lshl_add_u32 v2, v3, 5, v2")
    a("v_and_b32 v3, 3, v0"); a("v_lshl_add_u32 v2, v3, 3, v2")
    a("v_and_b32 v3, 8, v0"); a("v_xor_b32 v2, v2, v3")
    a("v_xor_b32 v3, 16, v2"); a("v_add_u32 v3, 256, v3")
    a("s_lshl_b32 s46, s51, 13"); a("s_add_u32 s46, s46, s53")
    a("v_add_u32 v%d, s46, v2" % KVR); a("v_add_u32 v%d, s46, v3" % (KVR + 1)); a("v_add_u32 v%d, s54, v2" % (KVR + 2)); a("v_add_u32 v%d, s54, v3" % (KVR + 3))
    a("v_lshrrev_b32 v1, 2, v0"); a("v_lshrrev_b32 v2, 4, v0"); a("v_xor_b32 v1, v1, v2"); a("v_and_b32 v1, 1, v1")
    a("v_subrev_u32 v1, 1, v1"); a("v_and_b32 v%d, 0x3f803f80, v1" % SEL)
    for i in range(1, 4): a("v_mov_b32 v%d, v%d" % (SEL + i, SEL))
    a("v_and_b32 v1, 15, v0"); a("v_lshlrev_b32 v1, 4, v1"); a("v_lshl_add_u32 v44, v2, 14, v1"); a("v_lshl_add_u32 v46, v2, 12, v1")
    a("v_lshrrev_b32 v1, 4, v0"); a("v_lshlrev_b32 v1, 1, v1"); a("v_and_b32 v2, 7, v0"); a("v_xor_b32 v1, v1, v2"); a("v_lshlrev_b32 v1, 4, v1")
    a("v_lshrrev_b32 v2, 3, v0"); a("v_lshl_add_u32 v1, v2, 11, v1"); a("s_lshl_b32 s46, s3, 15")
    a("v_add_u32 v%d, s46, v1" % VWO); a("v_add_u32 v%d, %d, v%d" % (VWO + 1, 8 * 2048 - 1024, VWO))
    a("s_mul_i32 s46, s51, %d" % (6 * U)); a("s_lshl_b32 s47, s52, 13"); a("s_add_u32 s46, s46, s47"); a("s_add_u32 s46, s46, %d" % (2 * U))
    a("v_add_u32 v45, s46, v9")
    a("s_lshl_b32 s46, s52, 1"); a("s_add_u32 s46, s46, s51"); a("s_lshl_b32 s47, s49, 2"); a("s_add_u32 s46, s46, s47")
    a("s_lshl_b32 s57, s46, 16"); a("s_lshl_b32 s47, s48, 10"); a("s_add_u32 s57, s57, s47"); a("s_add_u32 s57, s57, %d" % WS_P1)
    a("s_lshl_b32 s58, s46, 9"); a("s_lshl_b32 s47, s48, 2"); a("s_add_u32 s58, s58, s47"); a("s_add_u32 s58, s58, %d" % WS_F1)
    for l in ["s_lshl_b32 s47, s49, 4", "s_add_u32 s47, s47, s48", "s_lshl_b32 s16, s47, 7", "s_add_u32 s16, s16, %d" % WS_F1,
              "s_lshr_b32 s17, s47, 2", "s_lshl_b32 s17, s17, 9", "s_and_b32 s46, s48, 3", "s_lshl_b32 s47, s46, 4", "s_add_u32 s17, s17, s47",
              "s_lshl_b32 s47, s3, 2", "s_add_u32 s17, s17, s47", "s_add_u32 s17, s17, %d" % WS_F2,
              "s_xor_b32 s20, s49, 1", "s_lshl_b32 s20, s20, 4", "s_add_u32 s20, s20, s47", "s_add_u32 s20, s20, s46",
              "s_lshl_b32 s20, s20, 7", "s_add_u32 s20, s20, %d" % WS_F2]: a(l)
    for l in ["s_lshl_b32 s47, s49, 4", "s_add_u32 s47, s47, s48", "s_lshl_b32 s46, s3, 8",
           "s_lshl_b32 s18, s47, 14", "s_add_u32 s18, s18, s46", "s_add_u32 s18, s18, %d" % WS_P1,
           "s_lshl_b32 s22, s47, 10", "s_add_u32 s22, s22, s46", "s_add_u32 s22, s22, %d" % WS_P2,
           "s_xor_b32 s24, s49, 1", "s_lshl_b32 s24, s24, 14", "s_add_u32 s24, s24, s55", "s_add_u32 s24, s24, %d" % WS_P2,
           "s_lshl_b32 s21, s3, 6", "s_add_u32 s21, s21, %d" % U]: a(l)
    a.raw("s_waitcnt lgkmcnt(0)")
    a.raw("s_load_dword s44, s[14:15], 0")
    srd_rest()
    if cfg.warm:
        a("s_lshl_b32 s46, s2, 9"); a("s_lshl_b32 s47, s3, 7"); a("s_add_u32 s46, s46, s47"); a("s_add_u32 s46, s46, %d" % WS_F1)
        a("v_mov_b32 v1, 0"); a("s_mov_b64 exec, 1")
        a.raw("buffer_atomic_or v1, v1, s[28:31], s46 offen")
        a("s_mov_b64 exec, -1")
    mktag()

    def xo(n, i):
        t, ks = n >> 1, n & 1
        if t >= NB: return CAP + 16 * (t - NB) + 8 * ks + 4 * i
        return CAP + 16 * (NA - 1) + 8 * ks + 4 * i
    def xf(n, i): return xo(n, i) if i < 2 else XT + 8 * (n & 1) + 4 * (i - 2)
    def wf(n, j): return WF + 16 * (n & 1) + 4 * j
    def reads(n):
        t, ks = n >> 1, n & 1; sl = slot(t)
        def rx(i): return rd128(xf(n, i), XA + 2 * (i >> 1) + ks, 2 * U * sl + 2048 * (i & 1))
        def rw(j): return [trd(wf(n, j) + 2 * tt, WA + (j & 1), 2 * U * sl + U * (j >> 1) + 4096 * ks + 512 * tt) for tt in range(2)]
        return [rx(0)] + rw(0) + [rx(1), rx(2), rx(3)] + rw(1) + rw(2) + rw(3)
    def accK(i, j): return KA + 8 * i + 4 * j
    def accV(i, j): return VA + 8 * i + 4 * j
    def mm(n):
        return [mf16(accK(i, j) if j < 2 else accV(i, j - 2), wf(n, j), xf(n, i), "0" if n == 0 else None) for j in range(4) for i in range(4)]
    extra = {6: wphi_reads(WPK, 17, 0)}
    if cfg.pfwo == "c3b":
        a("v_lshrrev_b32 v3, 3, v0"); a("v_and_b32 v1, 7, v0"); a("v_lshlrev_b32 v1, 7, v1"); a("v_lshl_add_u32 v47, v3, 11, v1")
        a("s_lshr_b32 s46, s2, 3"); a("s_lshl_b32 s46, s46, 16"); a("s_lshl_b32 s47, s3, 14"); a("s_add_u32 s46, s46, s47")
        a("s_bfe_u32 s47, s2, 0x30003"); a("s_lshl_b32 s47, s47, 7"); a("s_sub_u32 s60, s46, s47")
    if cfg.pst: stamp(a, cfg, 3)
    a.bar()
    if not cfg.cnt: stamp(a, cfg, 1)
    for r in reads(0): a(r)
    TO, TW = WF, WF + 16
    for n in range(30):
        m = mm(n); r = reads(n + 1)
        if n % 2 == 0:
            r = r + extra.get(n, [])
            for i in range(16):
                a(m[i])
                if i < len(r): a(r[i])
        else:
            for i in range(16):
                if i == 4:
                    a.bar()
                    if cfg.hlp > 1 and n == cfg.hlp:
                        a("s_cmp_lg_u32 s61, 0"); a("s_cbranch_scc1 L_h1")
                        a.raw("buffer_load_dword v47, v47, s[4:7], s60 offen")
                        a.label("L_h1")
                    if n == 15 and not cfg.cnt and not cfg.pst: stamp(a, cfg, 2)
                    if n == 29 and not cfg.cnt and not cfg.pst: stamp(a, cfg, 3)
                a(m[i])
                if i >= 4: a(r[i - 4])
    po = pack_pair(TO, accK(2, 0), accK(3, 0), accK(2, 1), accK(3, 1))
    pw = pack_pair(TW, accK(0, 0), accK(1, 0), accK(0, 1), accK(1, 1))
    m30 = mm(30); m31 = mm(31); r = reads(31)
    for i in range(12): a(m30[i]); a(r[i])
    for x in [m31[2], m31[3], m31[6], m31[7], m31[0], m31[1], m31[4], m31[5]]: a(x)
    a.bar()
    if cfg.prio1 != cfg.prioA: a("s_setprio %d" % cfg.prio1)
    tail = m30[12:] + m31[8:]
    fill = po + pw
    k = 0
    for i, x in enumerate(tail):
        a(x)
        if i >= 1:
            for _ in range(2):
                if k < len(fill): a(fill[k]); k += 1
    while k < len(fill): a(fill[k]); k += 1
    stamp(a, cfg, 4)
    s0 = softmax(TO, WPK, KA, XT, WF, 10, WF)
    s1 = softmax(TW, WPK, KA + 16, VA + 16, WF + 16, (14, 2), WF + 16)
    vp = [cvt(VA + j, VA + 2 * j, VA + 2 * j + 1) for j in range(16)]
    vw = ["ds_write_b64 v%d, %s offset:%d" % (20 + j + 2 * (i >> 1), v(VA + 4 * i + 2 * j, 2), 1024 * (i & 1)) for i in range(4) for j in range(2)]
    def with_writes(L, OUT, AD):
        out = []
        for l in L:
            out.append(l)
            m_ = re.match(r"v_cvt_pk_bf16_f32 v(\d+),", l)
            if m_:
                k_ = int(m_.group(1)) - OUT
                if 0 <= k_ < 16 and k_ & 1:
                    out.append("ds_write_b64 v%d, %s offset:%d" % (AD + ((k_ & 7) >> 1), v(OUT + k_ - 1, 2), U * (k_ >> 3)))
        return out
    s0w = with_writes(s0[2:], WF, PHT); s1w = with_writes(s1[2:], WF + 16, PHO)
    vpw = []
    for i in range(4):
        for j in range(2):
            n_ = 2 * i + j
            vpw += [vp[2 * n_], vp[2 * n_ + 1], vw[n_]]
    for l in s0[:2] + s1[:2] + vpw[:12]: a(l)
    lead = vpw[12:] + [None] * max(0, cfg.stag - 12)
    y = lead + s1w
    for i in range(max(len(s0w), len(y))):
        if cfg.smst and i in cfg.smst: stamp(a, cfg, 1 + cfg.smst.index(i))
        if i < len(s0w): a(s0w[i])
        if i < len(y) and y[i]: a(y[i])
    stamp(a, cfg, 5)
    if cfg.prio2 != cfg.prio1: a("s_setprio %d" % cfg.prio2)
    a.bar()
    stamp(a, cfg, 6)
    FP, FV, KV, ZZ, KP = 48, 80, 128, 144, 112
    def kvr(ks):
        return [trd(FP + 4 * ks, KVR, 1024 * ks), trd(FP + 4 * ks + 2, KVR + 1, 1024 * ks), trd(FV + 4 * ks, KVR + 2, 1024 * ks), trd(FV + 4 * ks + 2, KVR + 3, 1024 * ks)]
    for ks in range(4):
        for l in kvr(ks): a(l)
    for g in range(4): a("v_mov_b32 v%d, s44" % (KP + 4 * g + 3))
    for g in range(1, 4): a("v_mov_b32 v%d, 0" % (KP + 4 * g + 2))
    a("v_lshlrev_b32 v13, 7, v0")
    a("v_mov_b32 v14, v16")
    for i in range(1, 4): a("v_xor_b32 v%d, %d, v14" % (14 + i, 32 * i))
    for ks in range(8):
        a(mf32(KV, FP + 4 * ks, FV + 4 * ks, "0" if ks == 0 else None))
        if ks + 4 < 8:
            for l in kvr(ks + 4): a(l)
    zl = [mf16(ZZ, SEL, FP + 4 * ks, "0" if ks == 0 else None) for ks in range(8)]
    for l in zl[:3]: a(l)
    for g in (3, 2, 1, 0):
        if g: a(zl[6 - g])
        else: a(zl[6]); a(zl[7])
        for j in range(2): a(cvt(KP + 4 * g + j, KV + 4 * g + 2 * j, KV + 4 * g + 2 * j + 1))
        if g == 0: a(cvt(KP + 2, ZZ, ZZ))
        a("buffer_store_dwordx4 %s, v44, s[28:31], s57 offen offset:%d sc1" % (v(KP + 4 * g, 4), 256 * g))
    a("s_mov_b64 exec, 15")
    a("buffer_atomic_swap v%d, v13, s[28:31], s58 offen" % (KP + 3))
    a("s_mov_b64 exec, -1")
    stamp(a, cfg, 7)
    if cfg.prio3 != cfg.prio2: a("s_setprio %d" % cfg.prio3)
    a.bar()
    QAA, QR = 48, 80
    fl = ["v_and_b32 v1, 1, v0", "v_lshlrev_b32 v1, 4, v1", "v_mov_b32 v2, 0x3f80",
          "v_lshlrev_b32 v1, v1, v2", "v_bfe_u32 v2, v0, 1, 2", "v_mov_b32 v135, s44"]
    for j in range(4):
        fl += ["v_cmp_eq_u32 vcc, %d, v2" % j, "v_cndmask_b32 v%d, 0, v1, vcc" % (SEL + j)]
    fl += ["v_mov_b32 v2, 0",
           "v_and_b32 v3, 15, v0", "v_lshrrev_b32 v4, 5, v0", "v_bfe_u32 v5, v0, 4, 1",
           "v_lshlrev_b32 v3, 4, v3", "v_lshl_add_u32 v3, v4, 10, v3", "v_lshl_add_u32 v3, v5, 3, v3", "v_add_u32 v20, s56, v3",
           "v_and_b32 v3, 3, v0", "v_bfe_u32 v4, v0, 2, 1", "v_and_b32 v5, 8, v0", "v_lshrrev_b32 v6, 4, v0",
           "v_lshl_add_u32 v3, v3, 1, v5", "v_lshl_add_u32 v3, v4, 4, v3", "v_lshl_add_u32 v3, v6, 9, v3", "v_add_u32 v21, s21, v3"]
    evA = {}
    for i, l in enumerate(fl): evA.setdefault(7 + i * 2 // 3, []).append(lambda l=l: a(l))
    def dma_wo(j):
        a("s_add_u32 m0, s56, %d" % ((4 + j) * U)); a("s_mov_b32 s59, %d" % (j * 64 * 2048))
        for i in range(2):
            a.wait(vm=cfg.pace_o)
            a("buffer_load_dwordx4 v%d, s[32:35], s59 offen offset:%d lds" % (VWO + i, 1024 * i), tag="WO")
    nfree = (cfg.c3b - 8) // 8 + cfg.early
    wof = [8, 9, 10, 11, 12, 13, 14, 15][:nfree]
    assert cfg.wo0 <= len(wof)
    woa = wof[:cfg.wo0]
    woa += [j for j in [0, 8, 1, 9, 2, 10, 3, 11, 12, 13, 6, 14, 7, 15] if j not in woa]
    wo3 = [4, 5]
    G = 136
    def p1loads():
        for i in range(4): a.raw("buffer_load_dwordx4 %s, v46, s[28:31], s18 offen offset:%d sc1" % (v(G + 4 * i, 4), 1024 * i))
    def tagcheck():
        a.raw("s_waitcnt vmcnt(0)"); a.vm = []
        a.raw("v_xor_b32 v3, s44, v%d" % (G + 3))
        for g in range(1, 4): a.raw("v_bitop3_b32 v3, v3, v%d, v135 bitop3:0xf6" % (G + 4 * g + 3))
        a.raw("v_cmp_ne_u32 vcc, 0, v3")
    def poll_issue(sreg, mask):
        a.raw("s_mov_b64 exec, 0x%x" % mask); a.raw("v_mov_b32 v12, 0")
        a.raw("buffer_atomic_or v12, v8, s[28:31], %s offen sc0" % sreg)
        a.raw("s_mov_b64 exec, -1")
    def poll(name, sreg, mask, issued):
        a.raw("s_mov_b32 s45, 0"); a.raw("s_mov_b64 exec, 0x%x" % mask)
        if issued: a.raw("s_branch %s_c" % name)
        a.label(name)
        a.raw("v_mov_b32 v12, 0")
        a.raw("buffer_atomic_or v12, v8, s[28:31], %s offen sc0" % sreg)
        if issued: a.label(name + "_c")
        a.raw("s_waitcnt vmcnt(0)"); a.vm = []
        a.raw("v_cmp_ne_u32 vcc, s44, v12")
        spin_tail(a, name)
        a.raw("s_mov_b64 exec, -1")
    def x0():
        stamp(a, cfg, 8)
        poll("L_f1", "s16", 0xffff, True)
        count(2)
        if cfg.cnt: stamp(a, cfg, 4)
        p1loads()
    def x1():
        a.raw("s_mov_b32 s45, 0"); a.raw("s_branch L_p1c")
        a.label("L_p1")
        p1loads()
        a.label("L_p1c")
        tagcheck()
        spin_tail(a, "L_p1")
        stamp(a, cfg, 9)
        for i in range(4): a(mf16(128, SEL, G + 4 * i, "0" if i == 0 else None))
        a(cvt(132, 128, 129)); a(cvt(133, 130, 131))
        a("v_permlane16_swap_b32 v132, v134")
        a("s_mov_b64 exec, 0xffff")
        a("buffer_store_dwordx4 v[132:135], v9, s[28:31], s22 offen sc1")
        a("s_mov_b64 exec, 15")
        a("buffer_atomic_swap v135, v13, s[28:31], s17 offen")
        a("s_mov_b64 exec, -1")
        stamp(a, cfg, 10)
        if cfg.pfwo == "c3b":
            a.raw("buffer_load_dword v1, v47, s[32:35], s60 offen"); a.vm.append((set(), "PF"))
        for j in woa[:cfg.wo0]: dma_wo(j)
    def c3bA():
        a.bar(lg0=False)
    assert 28 <= cfg.p1chk <= 54 and cfg.f1pos <= cfg.p1pos <= cfg.p1chk and cfg.c3bA <= 32 and cfg.c3bA < cfg.p1chk
    for i, p in enumerate(cfg.ast or []): evA.setdefault(p, []).append(lambda i=i: stamp(a, cfg, 1 + i))
    evA.setdefault(cfg.f1pos, []).append(lambda: poll_issue("s16", 0xffff))
    evA.setdefault(cfg.p1pos, []).append(x0)
    evA.setdefault(cfg.p1chk, []).append(x1)
    evA.setdefault(cfg.c3bA, []).append(c3bA)
    qstream(a, [QUNIT[t] for t in range(NB, 16)], lambda s, ks, rt: CAP + 16 * s + 8 * ks + 4 * rt, QAA, QR, 14, 0, evA, True)
    for i in (0, 4, 1, 5, 2, 6, 3, 7): a("ds_write_b128 v45, %s offset:%d" % (v(QAA + 4 * i, 4), 1024 * i))
    stamp(a, cfg, 11)
    poll_issue("s20", 0xffff)
    a.bar()
    w1 = cfg.wo0 + cfg.wo1
    for j in woa[cfg.wo0:w1]: dma_wo(j)
    a("ds_write_b32 v8, v2 offset:%d" % (U + 256))
    stamp(a, cfg, 12)
    poll("L_f2a", "s20", 0xffff, True)
    count(1)
    if cfg.cnt: stamp(a, cfg, 5)
    spin_head(a, "L_p2")
    for g in range(4): a.raw("buffer_load_dwordx4 %s, v9, s[28:31], s24 offen offset:%d sc1" % (v(G + 4 * g, 4), 1024 * g))
    tagcheck()
    spin_tail(a, "L_p2")
    stamp(a, cfg, 13)
    for g in range(4):
        a("ds_write_b64 v20, %s offset:%d" % (v(G + 4 * g, 2), g * 256))
        if g < 2: a("ds_write_b16 v21, v%d offset:%d" % (G + 4 * g + 2, g * 32))
    for j in woa[w1:]: dma_wo(j)
    stamp(a, cfg, 14)
    a.bar()
    for j in wo3: dma_wo(j)
    a("s_mov_b32 s47, 0")
    if cfg.prio3: a("s_setprio 0")

    a.label("L_G2")
    a.lg = []; a.vm = []
    rb2("s48", "s46")
    a("s_lshl_b32 s46, s48, 2"); a("s_add_u32 s46, s46, s3")
    a("s_lshl_b32 s58, s46, 10"); a("s_lshl_b32 s51, s47, 9"); a("s_add_u32 s58, s58, s51")
    if cfg.g2rot: a("s_bfe_u32 s57, s2, 0x30003")
    else: a("s_mov_b32 s57, 0")
    a("v_add_u32 v8, s57, v0"); a("v_and_b32 v8, 7, v8"); a("v_lshlrev_b32 v8, 2, v8")
    a("s_bfe_u32 s51, s2, 0x20003"); a("s_lshl_b32 s51, s51, 7"); a("s_add_u32 s58, s58, s51"); a("s_add_u32 s58, s58, %d" % WS_F3)
    poll_issue("s58", 0xff)
    a("s_lshl_b32 s59, s46, 16"); a("s_lshl_b32 s51, s47, 12"); a("s_add_u32 s59, s59, s51"); a("s_add_u32 s59, s59, %d" % WS_O)
    a("s_lshl_b32 s51, s47, 10"); a("v_add_u32 v10, s51, v9"); a("v_xor_b32 v11, 1024, v10")
    a("v_lshrrev_b32 v1, 5, v0"); a("v_bfe_u32 v2, v0, 2, 3"); a("v_lshl_add_u32 v1, v1, 4, v2"); a("v_lshlrev_b32 v1, 7, v1")
    a("v_bfe_u32 v2, v0, 3, 2"); a("v_lshl_add_u32 v1, v2, 5, v1"); a("v_and_b32 v2, 3, v0"); a("v_lshl_add_u32 v1, v2, 3, v1")
    a("s_lshl_b32 s51, s47, 13"); a("s_add_u32 s51, s51, %d" % (4 * U)); a("v_add_u32 v26, s51, v1")
    a("s_lshl_b32 s51, s3, 1"); a("s_add_u32 s51, s51, s47"); a("s_lshl_b32 s54, s51, 12")
    a("v_add_u32 v18, s54, v9"); a("v_xor_b32 v19, 4096, v18")
    a("s_lshl_b32 s54, s48, 18"); a("s_lshl_b32 s51, s51, 15"); a("s_add_u32 s54, s54, s51")
    cb128("s51", "s46"); a("s_add_u32 s54, s54, s51")
    a("v_and_b32 v1, 15, v0"); a("v_lshlrev_b32 v20, 11, v1"); a("v_bfe_u32 v1, v0, 4, 1"); a("v_lshl_add_u32 v20, v1, 5, v20")
    a("v_lshrrev_b32 v1, 5, v0"); a("v_lshl_add_u32 v20, v1, 4, v20")
    a("s_mov_b32 s24, 0"); a("s_mov_b32 s25, 0xff")
    a("s_cmp_eq_u32 s47, 0")
    a.force(vm=0)
    a("s_cbranch_scc1 L_G2A")
    a("s_mov_b64 exec, 15")
    a.raw("buffer_atomic_swap v3, v4, s[28:31], s52 offen")
    a("s_mov_b64 exec, -1")
    stamp(a, cfg, 14)
    a("s_branch L_G2C")
    a.label("L_G2A")
    stamp(a, cfg, 15)
    a.raw("s_barrier")
    a.label("L_G2C")
    stamp(a, cfg, 16)
    OF, ACC, RING = 128, 48, 80
    D = 7
    WS_ = [14, 22]
    def rdf(f, t):
        if f < 64:
            n, ct = f >> 2, f & 3
            if "nolds" in cfg.xp and ct >= 2: return
            a(trd(RING + 4 * (f % 8) + 2 * t, WS_[(n >> 1) & 1] + ct, (n & 1) * 4096 + t * 1024))
    nld = [0]
    def sel(k):
        nm = "L_s%d" % k
        if cfg.g2st and k in (1, 2, 4): stamp(a, cfg, {1: 1, 2: 3, 4: 5}[k])
        if k:
            a.raw("s_and_b32 s46, s24, s25"); a.raw("s_cbranch_scc1 %s_k" % nm)
            a.raw("s_waitcnt vmcnt(%d)" % nld[0])
        a.raw("s_mov_b32 s45, 0")
        a.label(nm)
        a.raw("v_cmp_eq_u32 vcc, s44, v12")
        a.raw("s_mov_b32 s24, vcc_lo"); a.raw("s_and_b32 s46, s24, s25")
        a.raw("s_cbranch_scc1 %s_k" % nm)
        a.raw("s_mov_b32 s46, s25")
        a.raw("s_add_u32 s45, s45, 1"); a.raw("s_cmp_ge_u32 s45, %d" % SPIN); a.raw("s_cbranch_scc1 %s_k" % nm)
        poll_issue("s58", 0xff)
        a.raw("s_waitcnt vmcnt(0)")
        a.raw("s_branch %s" % nm)
        a.label(nm + "_k")
        a.raw("s_ff1_i32_b32 s27, s46"); a.raw("s_bitset0_b32 s25, s27"); a.raw("s_add_u32 s27, s27, s57"); a.raw("s_and_b32 s27, s27, 7")
        a.raw("s_lshl_b32 s26, s27, 13"); a.raw("s_add_u32 s53, s59, s26"); a.raw("s_lshl_b32 s26, s27, 14")
        if cfg.g2st and k in (1, 2, 4): stamp(a, cfg, {1: 2, 2: 4, 4: 6}[k])
        w = WS_[k & 1]
        a("v_add_u32 v%d, s26, v26" % w)
        for i in range(1, 4): a("v_xor_b32 v%d, %d, v%d" % (w + i, 32 * i, w))
    def repoll(k):
        a.raw("s_and_b32 s46, s24, s25"); a.raw("s_cbranch_scc1 L_r%d" % k)
        poll_issue("s58", 0xff)
        a.label("L_r%d" % k)
        nld[0] = 0
    def old(n, i):
        if n < 16:
            if i == 1 and n & 1 == 0: sel(n >> 1)
            if n == 0 and i == 1: stamp(a, cfg, 17); count(3)
            if not ("noload" in cfg.xp and i == 0):
                a("buffer_load_dwordx4 %s, v%d, s[28:31], s53 offen offset:%d %s" % (v(OF + 8 * n + 4 * i, 4), 10 + i, 2048 * (n & 1), cfg.osc))
                nld[0] += 1
            if 2 * (n & 1) + 1 - i == cfg.rp and n < 14: repoll(n >> 1)
    assert 2 <= cfg.g2_pre <= 4
    for n in range(cfg.g2_pre): old(n, 1); old(n, 0)
    for f in range(D): rdf(f, 0); rdf(f, 1)
    for f in range(64):
        n, ct = f >> 2, f & 3
        for i in (1, 0):
            if not ("nomf" in cfg.xp and ct & 1): a(mf16(ACC + 16 * i + 4 * ct, RING + 4 * (f % 8), OF + 8 * n + 4 * i, "0" if n == 0 else None))
            rdf(f + D, 1 - i)
        if cfg.g2st and f in (0, 16, 32, 48, 56): stamp(a, cfg, {0: 7, 16: 8, 32: 9, 48: 10, 56: 11}[f])
        if ct == 0: old(n + cfg.g2_pre, 1)
        if ct == 2: old(n + cfg.g2_pre, 0)
    stamp(a, cfg, 18)
    for ct in range(4): a("ds_write_b128 v18, %s offset:%d" % (v(ACC + 16 + 4 * ct, 4), 1024 * ct))
    a.bar()
    for ct in range(4): a(rd128(RING + 4 * ct, 19, 1024 * ct))
    for j in range(2):
        for ct in (2 * j, 2 * j + 1):
            for h in range(2): a("v_pk_add_f32 %s, %s, %s" % (v(ACC + 4 * ct + 2 * h, 2), v(ACC + 4 * ct + 2 * h, 2), v(RING + 4 * ct + 2 * h, 2)))
        o = 112 + 4 * j
        for k in range(4): a(cvt(o + k, ACC + 8 * j + 2 * k, ACC + 8 * j + 2 * k + 1))
        a("v_permlane16_swap_b32 v%d, v%d" % (o, o + 2)); a("v_permlane16_swap_b32 v%d, v%d" % (o + 1, o + 3))
        a("buffer_store_dwordx4 %s, v20, s[36:39], s54 offen offset:%d %s" % (v(o, 4), 64 * j, cfg.outsc))
    a("s_or_b32 s46, s2, s3"); a("s_or_b32 s46, s46, s47")
    a("s_cmp_lg_u32 s46, 0"); a("s_cbranch_scc1 L_noep")
    a("v_mov_b32 v1, s44"); a("v_mov_b32 v2, 0"); a("s_mov_b64 exec, 1")
    a("buffer_store_dword v1, v2, s[28:31], 0 offen sc1")
    a("s_mov_b64 exec, -1")
    a.label("L_noep")
    if cfg.amp:
        idx, sh, wg = cfg.amp
        a.raw("s_waitcnt vmcnt(0)")
        stamp(a, cfg, 19)
        a.raw("s_waitcnt lgkmcnt(0)")
        a("s_or_b32 s46, s3, s47"); a("s_cmp_lg_u32 s46, 0"); a("s_cbranch_scc1 L_end")
        a("s_cmp_lg_u32 s2, %d" % wg); a("s_cbranch_scc1 L_end")
        a("s_sub_u32 s46, s%d, s%d" % (ST0 + 2 * idx, ST0)); a("s_lshl_b32 s46, s46, %d" % sh)
        a("s_min_u32 s46, s46, 40000"); a("s_mov_b32 s45, 0")
        a.label("L_amp")
        a.raw("s_memrealtime s[50:51]"); a.raw("s_waitcnt lgkmcnt(0)")
        a("s_sub_u32 s50, s50, s%d" % (ST0 + 38)); a("s_cmp_ge_u32 s50, s46"); a("s_cbranch_scc1 L_end")
        a("s_add_u32 s45, s45, 1"); a("s_cmp_lt_u32 s45, 100000"); a("s_cbranch_scc1 L_amp")
    elif cfg.stamps:
        a.raw("s_waitcnt vmcnt(0)")
        stamp(a, cfg, 19)
        a.raw("s_waitcnt lgkmcnt(0)")
        a("s_cmp_lg_u32 s3, 0"); a("s_cbranch_scc1 L_end")
        a("s_mul_i32 s60, s2, %d" % (NST * 8)); a("s_lshl_b32 s61, s47, 16"); a("s_add_u32 s60, s60, s61"); a("s_add_u32 s60, s60, %d" % WS_ST)
        a("v_mov_b32 v2, s60"); a("s_mov_b64 exec, 1")
        for i in range(NST):
            a("v_mov_b32 v4, s%d" % (ST0 + 2 * i)); a("v_mov_b32 v5, s%d" % (ST0 + 1 + 2 * i))
            a.raw("buffer_store_dwordx2 v[4:5], v2, s[28:31], 0 offen offset:%d" % (8 * i)); a.raw("s_waitcnt vmcnt(0)")
    a.label("L_end")
    a.raw("s_endpgm")
    return a

def sizes(lines):
    import subprocess
    body = [l for l in lines if not l.strip().startswith(".p2align")]
    labs = set(re.findall(r"L_pad\d+", "\n".join(body))) - set(l[:-1] for l in body if l.endswith(":"))
    open("_sz.s", "w").write('.amdgcn_target "amdgcn-amd-amdhsa--gfx950"\n.text\n' + "\n".join(body) + "\n" + "".join(x + ":\n" for x in labs))
    subprocess.run(["clang", "-x", "assembler", "-target", "amdgcn-amd-amdhsa", "-mcpu=gfx950", "-c", "_sz.s", "-o", "_sz.o"], check=True)
    d = subprocess.run(["llvm-objdump", "-d", "_sz.o"], capture_output=True, text=True).stdout
    return [4 * len(m.group(1).split()) for m in re.finditer(r"// [0-9A-F]{12}: ((?:[0-9A-F]{8} ?)+)", d)]

def layout(cfg, lines, verbose=False):
    ia = lines.index("L_A:"); ig = lines.index("L_G2:")
    assert lines[ia - 1].strip() == "s_branch L_G2"
    lines = lines[:ia - 1] + lines[ig:] + [".p2align 12"] + lines[ia:ig] + ["    s_branch L_G2", "L_last:"]
    lines = hazard.fix(lines, verbose=False)
    sz = sizes(lines)
    out = []; ad = 0x300; k = 0; np_ = 0; page = 0
    for l in lines:
        t = l.strip()
        if t == ".p2align 12":
            ad = (ad + 4095) & ~4095; page = ad >> 12
        elif t and not t.endswith(":") and not t.startswith("."):
            if ad >> 12 != page:
                page = ad >> 12
                if verbose: print("pad%d at 0x%x line %d" % (np_, ad, len(out)))
                if cfg.tch and any(np_ in x for x in cfg.tch.values()):
                    out += ["L_pad%d:" % np_, "    s_cbranch_execz L_ret"]; ad += 4
                np_ += 1
            ad += sz[k]; k += 1
        elif verbose and t.endswith(":"): print("   %s 0x%x" % (t, ad))
        if verbose and t == "s_barrier": print("      barrier 0x%x" % ad)
        out.append(l)
    assert k == len(sz)
    assert cfg.cpf * 64 * 32 >= ad - 0x300 or not cfg.cpf, ad
    return [".p2align 12"] + out

def build(cfg, path, verbose=False):
    a = gen(cfg)
    lines = layout(cfg, a.lines, verbose) if cfg.lay else hazard.fix(a.lines, verbose=False)
    for p in hazard.check_backedges(lines): print("BACKEDGE HAZARD:", p)
    out = HEADER + "; @launch grid=(256,1,1) block=(512,1,1) lds=163840\n"
    out += '.amdgcn_target "amdgcn-amd-amdhsa--gfx950"\n.text\n' + "\n".join(lines) + "\n"
    out += '.section .rodata,"a"\n.p2align 6\n' + kd(NAME, 256, 102 if cfg.stamps else 64, 256)
    open(path, "w").write(out)

def mk(path, verbose=False, **kw):
    c = Cfg()
    for k, x in kw.items():
        assert hasattr(c, k), k
        setattr(c, k, x)
    build(c, path, verbose)

if __name__ == "__main__":
    mk("v8.s")
    B = dict(stamps=True)
    mk("v8a_st.s", **B)
    mk("v8b_st.s", kx=True, **B)
    mk("v8c_st.s", g2_pre=4, **B)
```
